```python
import torch

def _softmax(x, axis=-1):
    return torch.softmax(x, dim=axis)
def _gelu(x):
    return torch.nn.functional.gelu(x, approximate="tanh")
def _silu(x):
    return torch.nn.functional.silu(x)
def _sigmoid(x):
    return torch.sigmoid(x)
def _layernorm(x, axis=-1, eps=1e-5):
    m = x.mean(dim=axis, keepdim=True)
    v = x.var(dim=axis, keepdim=True, unbiased=False)
    return (x - m) / torch.sqrt(v + eps)
def _scatter_add(tgt, idx, src, axis=0):
    return tgt.clone().index_add_(axis, idx, src)
def _segment_sum(src, seg, n):
    out = torch.zeros((n,) + src.shape[1:], dtype=src.dtype)
    return out.index_add_(0, seg, src)
def _pad(x, pw):
    flat = tuple(v for pair in reversed(pw) for v in pair)
    return torch.nn.functional.pad(x, flat)

kernel_name = 'parallel_sum__spectral_gfnet__glu_gated_reglu__prompt'

def setup_inputs():

    _w = (lambda a: (lambda t: t.to(torch.bfloat16) if t.is_floating_point() else t)(torch.as_tensor(a)))
    def _A_setup():
        B, S, D = 1, 2048, 640
        Df = D // 2 + 1
        return {
            "x": _w((lambda *s: torch.randn(*s, dtype=torch.bfloat16) * 0.05)(B, S, D)),
            "w_r": _w((lambda *s: torch.randn(*s, dtype=torch.bfloat16) * 0.4)(S, Df) * 0.02),
            "w_i": _w((lambda *s: torch.randn(*s, dtype=torch.bfloat16) * 0.4)(S, Df) * 0.02),
        }
    _A_in = _A_setup()

    def _B_setup():
        B, S, D, F = 1, 2048, 640, 1536
        return {
            "x": _w((lambda *s: torch.randn(*s, dtype=torch.bfloat16) * 0.05)(B, S, D)),
            "W_gate": _w((lambda *s: torch.randn(*s, dtype=torch.bfloat16) * 0.2)(D, F) * (2.0 / D) ** 0.5),
            "W_up": _w((lambda *s: torch.randn(*s, dtype=torch.bfloat16) * 0.2)(D, F) * (2.0 / D) ** 0.5),
            "W_down": _w((lambda *s: torch.randn(*s, dtype=torch.bfloat16) * 0.2)(F, D) * (1.0 / F) ** 0.5),
        }
    _B_in = _B_setup()

    return {
        "A_x": _A_in["x"],
        "A_w_r": _A_in["w_r"],
        "A_w_i": _A_in["w_i"],
        "B_x": _B_in["x"],
        "B_W_gate": _B_in["W_gate"],
        "B_W_up": _B_in["W_up"],
        "B_W_down": _B_in["W_down"],
    }

def reference(A_x, A_w_r, A_w_i, B_x, B_W_gate, B_W_up, B_W_down):
    def _A_ref(x, w_r, w_i):
        B, S, D = x.shape
        X = (lambda x, axes=(-2,-1): torch.fft.rfft2(x.float(), dim=axes))(x, axes=(-2, -1))
        W = w_r + 1j * w_i
        X = X * W
        y = (lambda x, s, axes=(-2,-1): torch.fft.irfft2(x, s=s, dim=axes).to(torch.bfloat16))(X, (S, D), axes=(-2, -1))
        return y

    def _B_ref(x, W_gate, W_up, W_down):
        gate = torch.einsum("bsd,df->bsf", x, W_gate)
        up = torch.einsum("bsd,df->bsf", x, W_up)
        gate = gate * (lambda x, dt: x.to(dt))(gate > 0, gate.dtype)
        h = gate * up
        return torch.einsum("bsf,fd->bsd", h, W_down)

    x = A_x
    xn = _layernorm(x, axis=-1)
    return x + _A_ref(xn, A_w_r, A_w_i) + _B_ref(xn, B_W_gate, B_W_up, B_W_down)
```

```python
import re

_RANGE = re.compile(r'^([vas])\[(\d+):(\d+)\]$')
_SINGLE = re.compile(r'^([vas])(\d+)$')


def regs_of(tok):
    t = tok.strip()
    if t.startswith('-'):
        t = t[1:]
    if t.startswith('|') and t.endswith('|'):
        t = t[1:-1]
    if t.startswith('abs(') and t.endswith(')'):
        t = t[4:-1]
    m = _RANGE.match(t)
    if m:
        return [f"{m.group(1)}{i}" for i in range(int(m.group(2)), int(m.group(3)) + 1)]
    m = _SINGLE.match(t)
    if m:
        return [t]
    if t == 'vcc':
        return ['vcc']
    if t in ('vcc_lo', 'vcc_hi'):
        return ['vcc']
    if t in ('exec', 'exec_lo', 'exec_hi'):
        return ['exec']
    if t == 'm0':
        return ['m0']
    return []


def split_ops(s):
    out, depth, cur = [], 0, ''
    for ch in s:
        if ch in '[(':
            depth += 1
        if ch in '])':
            depth -= 1
        if ch == ',' and depth == 0:
            out.append(cur.strip())
            cur = ''
        else:
            cur += ch
    if cur.strip():
        out.append(cur.strip())
    return out


TRANS = ('v_exp_', 'v_log_', 'v_rcp_', 'v_rsq_', 'v_sqrt_', 'v_sin_', 'v_cos_')
NODST_S = ('s_cmp', 's_cbranch', 's_branch', 's_waitcnt', 's_barrier', 's_nop', 's_endpgm', 's_sleep',
           's_setprio', 's_bitcmp', 's_setreg')


class Ins:
    __slots__ = ('text', 'op', 'reads', 'writes', 'kind', 'tag', 'passes', 'srcc', 'ab', 'wide', 'opt', 'waitfor')

    def __init__(self, text, tag=None):
        self.text = text
        self.tag = tag
        self.opt = None
        self.waitfor = None
        self.passes = 0
        self.srcc = []
        self.ab = []
        self.wide = False
        s = text.split(';')[0].strip()
        if s.endswith(':') or s.startswith('.') or not s:
            self.op = ''
            self.kind = 'label' if s.endswith(':') else 'dir'
            self.reads, self.writes = [], []
            return
        parts = s.split(None, 1)
        op = self.op = parts[0]
        rest = parts[1] if len(parts) > 1 else ''
        ops = split_ops(rest)
        mods = ''
        if ops:
            lp = ops[-1].split(None, 1)
            if len(lp) > 1 and not ops[-1].startswith('hwreg'):
                ops[-1], mods = lp[0], lp[1]
        R = [regs_of(o) for o in ops]
        flat = lambda L: [r for x in L for r in x]
        rd, wr = [], []
        if op.startswith('v_mfma'):
            self.kind = 'mfma'
            wr = R[0]
            rd = flat(R[1:])
            self.ab = R[1] + R[2]
            self.srcc = R[3]
            self.passes = 8 if '32x32x16' in op else 4 if '16x16x32' in op else 2 if '4x4x4' in op else None
            assert self.passes
        elif op.startswith('v_'):
            self.kind = 'valu'
            if op.startswith('v_permlane') and 'swap' in op:
                wr = R[0] + R[1]
                rd = R[0] + R[1]
            elif op.startswith(('v_add_co', 'v_sub_co', 'v_addc_co', 'v_subb_co', 'v_subrev_co')):
                wr = R[0] + R[1]
                rd = flat(R[2:])
            elif op.startswith(('v_fmac', 'v_dot2c', 'v_pk_fmac', 'v_writelane')):
                wr = R[0]
                rd = flat(R)
            elif op == 'v_nop':
                pass
            else:
                wr = R[0]
                rd = flat(R[1:])
            if 'dpp' in op or 'row_' in mods or 'quad_perm' in mods:
                self.kind = 'valu'
                self.wide = 'dpp'
                rd = rd + wr
            rd = rd + ['exec']
        elif op.startswith('ds_'):
            self.kind = 'lds'
            if op.startswith(('ds_read', 'ds_bpermute', 'ds_permute', 'ds_swizzle')):
                wr = R[0]
                rd = flat(R[1:])
            else:
                rd = flat(R)
        elif op.startswith(('buffer_', 'global_')):
            self.kind = 'vmem'
            allm = mods + ' ' + ' '.join(ops)
            if op in ('buffer_wbl2', 'buffer_inv'):
                pass
            elif 'load' in op:
                if re.search(r'\blds\b', mods):
                    rd = flat(R) + ['m0']
                    self.kind = 'dma'
                else:
                    wr = R[0]
                    rd = flat(R[1:])
                    if 'd16' in op:
                        rd = rd + wr
            elif 'atomic' in op:
                rd = flat(R)
                if 'sc0' in mods:
                    wr = R[0]
            else:
                rd = flat(R)
                if 'x4' in op or 'x3' in op:
                    self.wide = R[0] if op.startswith('buffer') else R[1]
        elif op.startswith(('s_load', 's_buffer_load', 's_memtime', 's_memrealtime')):
            self.kind = 'smem'
            wr = R[0]
            rd = flat(R[1:])
        elif op.startswith('s_'):
            self.kind = 'salu'
            if op.startswith(NODST_S):
                rd = flat(R)
            else:
                wr = R[0]
                rd = flat(R[1:])
                if 'saveexec' in op:
                    wr = wr + ['exec']
                    rd = rd + ['exec']
                if op.startswith(('s_addk', 's_mulk', 's_cmov', 's_bitset')):
                    rd = rd + wr
        else:
            raise ValueError(text)
        self.reads, self.writes = rd, wr


class Prog:
    def __init__(self):
        self.ins = []
        self._opt = None
        self._nopt = 0

    def __call__(self, text, tag=None):
        for line in text.split('\n'):
            line = line.strip()
            if not line:
                continue
            i = Ins(line, tag)
            i.opt = self._opt
            self.ins.append(i)
        return self

    def wait_tag(self, *tags):
        i = Ins('s_nop 0')
        i.kind = 'waittag'
        i.waitfor = tags
        i.opt = self._opt
        self.ins.append(i)

    def wait_lds(self):
        i = Ins('s_nop 0')
        i.kind = 'waitlds'
        i.opt = self._opt
        self.ins.append(i)

    def wait_all_vm(self):
        i = Ins('s_nop 0')
        i.kind = 'waitvm'
        i.opt = self._opt
        self.ins.append(i)

    def reset(self):
        i = Ins('s_nop 0')
        i.kind = 'reset'
        self.ins.append(i)

    def opt_begin(self):
        assert self._opt is None
        self._nopt += 1
        self._opt = self._nopt

    def opt_end(self):
        self._opt = None

    def _waits(self):
        out = []
        vm, lg = [], []

        def count_after(q, idx):
            me = q[idx]['opt']
            return sum(1 for e in q[idx + 1:] if e['opt'] is None or e['opt'] == me)

        def emit(vn, ln, cur_opt):
            nonlocal vm, lg
            parts = []
            if vn is not None:
                parts.append(f"vmcnt({min(vn[0], 63)})")
                if cur_opt is None:
                    vm = vm[vn[1] + 1:]
                else:
                    vm = [dict(e, done=cur_opt) if e['opt'] != cur_opt else None for e in vm[:vn[1] + 1]] + vm[vn[1] + 1:]
                    vm = [e for e in vm if e is not None]
            if ln is not None:
                parts.append(f"lgkmcnt({min(ln[0], 15)})")
                if cur_opt is None:
                    lg = lg[ln[1] + 1:]
                else:
                    lg = [dict(e, done=cur_opt) if e['opt'] != cur_opt else None for e in lg[:ln[1] + 1]] + lg[ln[1] + 1:]
                    lg = [e for e in lg if e is not None]
            if parts:
                w = Ins('s_waitcnt ' + ' '.join(parts))
                w.opt = cur_opt
                out.append(w)

        def live(e, cur_opt):
            return not (cur_opt is not None and e.get('done') == cur_opt)

        for i in self.ins:
            if i.kind == 'reset':
                vm, lg = [], []
                continue
            vn = ln = None
            if i.kind == 'waittag':
                idx = [k for k, e in enumerate(vm) if e['tag'] in i.waitfor and live(e, i.opt)]
                if idx:
                    k = max(idx)
                    vn = (count_after(vm, k), k)
                emit(vn, None, i.opt)
                continue
            if i.kind == 'waitlds':
                if any(live(e, i.opt) for e in lg):
                    emit(None, (0, len(lg) - 1), i.opt)
                continue
            if i.kind == 'waitvm':
                if any(live(e, i.opt) for e in vm):
                    emit((0, len(vm) - 1), None, i.opt)
                continue
            touched = set(i.reads) | set(i.writes)
            if touched:
                idx = [k for k, e in enumerate(vm) if e['regs'] & touched and live(e, i.opt)]
                if idx:
                    k = max(idx)
                    vn = (count_after(vm, k), k)
                idx = [k for k, e in enumerate(lg) if e['regs'] & touched and live(e, i.opt)]
                if idx:
                    k = max(idx)
                    if any(e['smem'] for e in lg):
                        ln = (0, len(lg) - 1)
                    else:
                        ln = (count_after(lg, k), k)
                emit(vn, ln, i.opt)
            if i.op == 's_waitcnt':
                m = re.search(r'vmcnt\((\d+)\)', i.text)
                if m and int(m.group(1)) == 0 and i.opt is None:
                    vm = []
                m = re.search(r'lgkmcnt\((\d+)\)', i.text)
                if m and int(m.group(1)) == 0 and i.opt is None:
                    lg = []
            out.append(i)
            if i.kind in ('vmem', 'dma'):
                vm.append(dict(regs=set(i.writes), tag=i.tag, opt=i.opt, smem=False))
            elif i.kind == 'lds':
                lg.append(dict(regs=set(i.writes), tag=i.tag, opt=i.opt, smem=False))
            elif i.kind == 'smem':
                lg.append(dict(regs=set(i.writes), tag=i.tag, opt=i.opt, smem=True))
        return out

    @staticmethod
    def _need(p, c):
        n = 0
        pw, cr, cw = set(p.writes), set(c.reads), set(c.writes)
        if p.kind == 'valu':
            vw = {r for r in pw if r[0] in 'va' and r != 'vcc'}
            sw = pw - vw
            if c.kind == 'mfma' and vw & cr:
                n = max(n, 2)
            if c.kind == 'valu':
                if c.op.startswith(('v_readlane', 'v_readfirstlane')) and vw & cr:
                    n = max(n, 1)
                if c.op.startswith('v_permlane') and vw & cr:
                    n = max(n, 2)
                if c.wide == 'dpp' and vw & cr:
                    n = max(n, 2)
                if sw & cr:
                    n = max(n, 4 if c.op.startswith(('v_readlane', 'v_writelane', 'v_div_fmas')) else 2)
                if p.op.startswith(TRANS) and not c.op.startswith(TRANS) and vw & cr:
                    n = max(n, 1)
            if p.op.startswith('v_dot') and vw & (cr | cw):
                same = c.op == p.op
                if not (same and not (vw & set(r for r in c.reads[len(c.writes):]))):
                    n = max(n, 3)
            if c.kind in ('vmem', 'dma') and sw & cr:
                n = max(n, 5)
            if c.kind in ('salu', 'smem') and sw & cr:
                n = max(n, 1)
            if 'exec' in pw:
                n = max(n, 5)
        if p.kind == 'mfma':
            big = {2: 5, 4: 8, 8: 12}[p.passes]
            ovl = {2: 4, 4: 6, 8: 10}[p.passes]
            if c.kind == 'mfma':
                if pw & set(c.ab):
                    n = max(n, big)
                if pw & set(c.srcc):
                    if c.srcc == p.writes and c.passes == p.passes:
                        n = max(n, 2 if p.passes == 2 else 0)
                    else:
                        n = max(n, ovl)
                elif pw & cw:
                    n = max(n, big)
            elif c.kind in ('valu', 'lds', 'vmem', 'dma'):
                if pw & (cr | cw):
                    n = max(n, big)
                if c.kind == 'valu' and set(p.srcc) & cw:
                    n = max(n, {2: 1, 4: 3, 8: 7}[p.passes])
        if p.kind == 'salu' and 'm0' in pw and 'm0' in cr and c.kind != 'salu':
            n = max(n, 1)
        if p.kind == 'vmem' and p.wide and set(p.wide) & cw:
            n = max(n, 2)
        return n

    def _nops(self, ins):
        out = []
        for c in ins:
            if c.kind in ('label', 'dir'):
                out.append(c)
                continue
            need = 0
            for skip in (False, True):
                dist = 0
                for p in reversed(out):
                    if p.kind in ('label', 'dir'):
                        continue
                    if skip and p.opt is not None and p.opt != c.opt:
                        continue
                    if dist >= 20:
                        break
                    need = max(need, self._need(p, c) - dist)
                    if p.op == 's_nop':
                        dist += int(p.text.split()[1]) + 1
                    else:
                        dist += 1
            if need > 0:
                w = Ins(f's_nop {need - 1}')
                w.opt = c.opt
                out.append(w)
            out.append(c)
        return out

    def text(self):
        ins = self._nops(self._waits())
        return '\n'.join(('' if i.kind == 'label' else '  ') + i.text for i in ins) + '\n'
```

```python
import struct, sys
from asmlib import Prog

NAME = "parallel_sum__spectral_gfnet__glu_gated_reglu__prompt"
S, D, F, NT = 2048, 640, 1536, 21

WS_T, WS_U, WS_H, WS_WD, WS_IT = 0, 0x300000, 0x600000, 0xC00000, 0xE00000


def f2u(x):
    return struct.unpack('<I', struct.pack('<f', x))[0]


def hx(x):
    return hex(f2u(x))


def vr(i, n=4): return f"v[{i}:{i + n - 1}]"
def ar(i, n=4): return f"a[{i}:{i + n - 1}]"
def sr(i, n=4): return f"s[{i}:{i + n - 1}]"


SX, SG, SU, SD, SWS, SO, SWR, SWI = 28, 32, 36, 40, 44, 48, 52, 56
sW = 60


def prologue(p, nwg, end):
    p.reset()
    p(f"s_cmp_ge_u32 s2, {nwg}")
    p(f"s_cbranch_scc1 {end}")
    p("s_load_dwordx16 s[8:23], s[0:1], 0")
    p("s_load_dwordx4 s[24:27], s[0:1], 64")
    p("v_lshrrev_b32 v1, 6, v0")
    p("v_and_b32 v0, 63, v0")
    p(f"v_readfirstlane_b32 s{sW}, v1")
    for srd, src, size in ((SX, 8, S * D * 2), (SG, 16, D * F * 2), (SU, 18, D * F * 2), (SD, 20, D * F * 2),
                           (SWS, 26, 0x10000000), (SO, 22, S * D * 2), (SWR, 10, S * 321 * 2), (SWI, 12, S * 321 * 2)):
        p(f"s_mov_b32 s{srd}, s{src}")
        p(f"s_mov_b32 s{srd + 1}, s{src + 1}")
        p(f"s_mov_b32 s{srd + 2}, {size}")
        p(f"s_mov_b32 s{srd + 3}, 0x20000")


def kd_block(name, vg, acc, sg=102):
    return f"""
.section .rodata,"a"
.p2align 6
.amdhsa_kernel {name}
  .amdhsa_next_free_vgpr {vg}
  .amdhsa_next_free_sgpr {sg}
  .amdhsa_accum_offset {acc}
  .amdhsa_group_segment_fixed_size 0
  .amdhsa_kernarg_size 80
  .amdhsa_user_sgpr_count 2
  .amdhsa_user_sgpr_kernarg_segment_ptr 1
  .amdhsa_system_sgpr_workgroup_id_x 1
.end_amdhsa_kernel
.text
"""


TAB, XS, RING, MISC = 0, 40960, 90112, 155648
EX0, EX1, CSX = XS, XS + 12288, XS + 20480
LDS1 = 163840


def k1(p):
    end = "K1_end"
    prologue(p, 256, end)
    sRB, sCB, sS2, sT0, sT1, sFA, sFB = 61, 62, 63, 64, 65, 66, 67
    sA, sB, sC, sM0X, sM0R, sONE, sHA, sHB, sTO = 68, 69, 70, 71, 72, 73, 74, 75, 76
    p("s_and_b32 s3, s2, 7")
    p("s_lshr_b32 s4, s2, 3")
    p("s_and_b32 s5, s3, 1\ns_lshl_b32 s5, s5, 3\ns_and_b32 s6, s4, 7")
    p(f"s_add_u32 s{sRB}, s5, s6")
    p("s_lshr_b32 s5, s3, 1\ns_lshl_b32 s5, s5, 2\ns_lshr_b32 s6, s4, 3")
    p(f"s_add_u32 s{sCB}, s5, s6")
    p(f"s_lshl_b32 s{sS2}, s{sRB}, 2\ns_add_u32 s{sS2}, s{sS2}, s{sW}")
    p(f"s_mov_b32 s{sT0}, s{sCB}")
    p(f"s_lshr_b32 s5, s{sCB}, 2\ns_add_u32 s5, s5, 16\ns_and_b32 s6, s{sCB}, 3\ns_cmp_eq_u32 s6, 0")
    p(f"s_cselect_b32 s{sT1}, s5, 0\ns_cmp_eq_u32 s{sCB}, 1\ns_cselect_b32 s{sT1}, 20, s{sT1}")
    p(f"s_mul_i32 s5, s{sCB}, 96\ns_and_b32 s6, s{sCB}, 1\ns_lshl_b32 s7, s6, 5")
    p(f"s_add_u32 s{sFA}, s5, s7")
    p(f"s_xor_b32 s6, s6, 1\ns_lshl_b32 s6, s6, 6\ns_add_u32 s{sFB}, s5, s6")
    p(f"s_mov_b32 s{sONE}, 0x3f803f80")

    vL = 0
    vXG = 2
    vXR = 6
    vL16 = 10
    vGA, vGB = 11, 12
    vRA, vRB = 13, 14
    vCA, vCB_ = 15, 16
    vSUM, vSQ = 17, 18
    vNM, vR2 = 19, 20
    vSGN, vDC = 21, 22
    vEXW, vTST, vHST = 23, 24, 25
    vSTA = 26
    vT = 28
    vC1 = 60
    vXT = 76
    vTB = 108
    vACC = 124
    vFR = 188
    vCF = 220
    vCS = 228
    vIND = 232
    vRR = 236
    t = lambda i: f"v{vT + i}"

    p(f"v_lshrrev_b32 {t(0)}, 3, v0")
    p(f"v_lshlrev_b32 {t(0)}, 6, {t(0)}")
    p(f"v_add_u32 {t(0)}, s{sS2}, {t(0)}")
    p(f"v_mul_u32_u24 {t(0)}, 1280, {t(0)}")
    p(f"v_and_b32 {t(1)}, 7, v0\nv_lshrrev_b32 {t(2)}, 4, v0")
    p(f"v_xor_b32 {t(3)}, {t(1)}, {t(2)}")
    p(f"v_xor_b32 {t(4)}, 4, {t(3)}")
    for i in range(4):
        p(f"v_lshl_add_u32 v{vXG + i}, {t(3 + (i & 1))}, 4, {t(0)}")
        if i:
            p(f"v_add_u32 v{vXG + i}, {i * 655360 - i * 1024}, v{vXG + i}")
    p(f"s_mul_i32 s{sM0X}, s{sW}, 12288\ns_add_u32 s{sM0X}, s{sM0X}, {XS}")

    def x_dma(sl):
        p(f"s_add_u32 m0, s{sM0X}, {(sl % 3) * 4096}")
        p(f"s_movk_i32 s{sA}, {sl * 128}")
        for i in range(4):
            p(f"buffer_load_dwordx4 v{vXG + i}, {sr(SX)}, s{sA} offen offset:{i * 1024} lds", tag=('x', sl))

    for sl in range(3):
        x_dma(sl)

    p(f"v_lshrrev_b32 {t(0)}, 2, v0\nv_and_b32 {t(1)}, 7, {t(0)}")
    p(f"s_lshl_b32 s5, s{sW}, 3\nv_add_u32 {t(1)}, s5, {t(1)}\nv_mul_u32_u24 {t(1)}, 3072, {t(1)}")
    p(f"v_and_b32 {t(2)}, 3, v0\nv_lshlrev_b32 {t(2)}, 4, {t(2)}")
    p(f"v_lshrrev_b32 {t(3)}, 5, v0\nv_lshl_add_u32 {t(3)}, {t(3)}, 6, {t(2)}")
    p(f"s_lshl_b32 s5, s{sFA}, 1\nv_add3_u32 v{vGA}, {t(1)}, {t(3)}, s5")
    p(f"s_lshl_b32 s5, s{sW}, 4\nv_add_u32 {t(1)}, s5, {t(0)}\nv_mul_u32_u24 {t(1)}, 3072, {t(1)}")
    p(f"s_lshl_b32 s5, s{sFB}, 1\nv_add3_u32 v{vGB}, {t(1)}, {t(2)}, s5")
    p(f"s_lshl_b32 s{sM0R}, s{sW}, 11\ns_add_u32 s{sM0R}, s{sM0R}, {RING}")

    def ring_dma(st):
        if st >= 30:
            return
        slot = (st % 8) * 8192
        va, off = (vGA, st * 98304) if st < 20 else (vGB, (st - 20) * 196608)
        p(f"s_mov_b32 s{sB}, {off}")
        p(f"s_add_u32 m0, s{sM0R}, {slot}")
        p(f"buffer_load_dwordx4 v{va}, {sr(SG)}, s{sB} offen lds", tag=('w', st))
        p(f"s_add_u32 m0, s{sM0R}, {slot + 1024}")
        p(f"buffer_load_dwordx4 v{va}, {sr(SU)}, s{sB} offen lds", tag=('w', st))

    sT32, sC5 = 77, 78
    p(f"s_mul_hi_u32 s{sT32}, s2, {(2**32 + 4) // 5}\ns_mul_i32 s5, s{sT32}, 5\ns_sub_u32 s{sC5}, s2, s5")
    p(f"v_lshrrev_b32 {t(0)}, 4, v0\ns_lshl_b32 s5, s{sW}, 3\ns_lshl_b32 s6, s{sT32}, 5\ns_add_u32 s5, s5, s6")
    p(f"v_add_u32 {t(0)}, s5, {t(0)}\nv_mul_u32_u24 {t(0)}, 1280, {t(0)}")
    p(f"v_and_b32 {t(1)}, 15, v0\nv_lshl_add_u32 {t(0)}, {t(1)}, 4, {t(0)}")
    p(f"s_lshl_b32 s5, s{sC5}, 8\ns_add_u32 s6, s5, {4 * 1280}\ns_lshl_b32 s7, s{sW}, 11")
    p(f"s_add_u32 m0, s7, {MISC}")
    p(f"buffer_load_dwordx4 {t(0)}, {sr(SD)}, s5 offen lds", tag='wd')
    p(f"s_add_u32 m0, s7, {MISC + 1024}")
    p(f"buffer_load_dwordx4 {t(0)}, {sr(SD)}, s6 offen lds", tag='wd')

    p(f"v_lshlrev_b32 v{vL16}, 4, v0")
    p(f"v_and_b32 {t(0)}, 31, v0\nv_lshrrev_b32 {t(1)}, 5, v0")
    p(f"v_lshrrev_b32 {t(2)}, 1, {t(0)}\nv_and_b32 {t(2)}, 7, {t(2)}\nv_xor_b32 {t(2)}, {t(2)}, {t(1)}")
    p(f"v_lshlrev_b32 {t(3)}, 7, {t(0)}\nv_add_u32 {t(3)}, s{sM0X}, {t(3)}")
    for tt in range(4):
        p(f"v_xor_b32 {t(4)}, {2 * tt}, {t(2)}")
        p(f"v_lshl_add_u32 v{vXR + tt}, {t(4)}, 4, {t(3)}")
    p(f"v_and_b32 {t(2)}, 15, v0\nv_lshrrev_b32 {t(3)}, 2, {t(2)}\nv_lshlrev_b32 {t(3)}, 6, {t(3)}")
    p(f"v_and_b32 {t(2)}, 3, v0\nv_lshl_add_u32 {t(3)}, {t(2)}, 3, {t(3)}")
    p(f"v_bfe_u32 {t(2)}, v0, 4, 1\nv_lshl_add_u32 {t(3)}, {t(2)}, 5, {t(3)}")
    p(f"v_add_u32 {t(3)}, {RING}, {t(3)}")
    p(f"v_lshl_add_u32 v{vRA}, {t(1)}, 11, {t(3)}")
    p(f"v_lshl_add_u32 v{vRB}, {t(1)}, 9, {t(3)}")
    p(f"s_lshl_b32 s5, s{sW}, 9\nv_add_u32 v{vCA}, s5, v{vRA}")
    p(f"s_and_b32 s5, s{sW}, 1\ns_lshl_b32 s5, s5, 10\ns_lshr_b32 s6, s{sW}, 1\ns_lshl_b32 s6, s6, 11\ns_add_u32 s5, s5, s6")
    p(f"v_add_u32 v{vCB_}, s5, v{vRB}")
    p(f"v_and_b32 {t(2)}, 15, v0\nv_bfe_u32 {t(3)}, v0, 4, 1\nv_cmp_eq_u32 vcc, {t(2)}, {t(3)}")
    p(f"v_mov_b32 {t(4)}, s{sONE}")
    p(f"v_cndmask_b32 v{vIND}, 0, {t(4)}, vcc")
    for i in range(1, 4):
        p(f"v_mov_b32 v{vIND + i}, v{vIND}")
    p(f"v_lshlrev_b32 {t(4)}, 2, {t(1)}\nv_add_u32 {t(4)}, {t(4)}, {t(3)}\nv_lshlrev_b32 {t(4)}, 8, {t(4)}")
    p(f"v_lshl_add_u32 {t(4)}, {t(2)}, 4, {t(4)}\ns_lshl_b32 s5, s{sW}, 2\nv_add_u32 v{vEXW}, s5, {t(4)}")
    p(f"v_lshrrev_b32 {t(4)}, 4, v0\ns_lshl_b32 s5, s{sW}, 3\nv_add_u32 {t(4)}, s5, {t(4)}")
    p(f"s_mov_b32 s5, 86016\nv_mul_lo_u32 {t(4)}, {t(4)}, s5\nv_lshl_add_u32 v{vTST}, {t(2)}, 4, {t(4)}")
    p(f"v_lshlrev_b32 {t(4)}, 10, {t(3)}\nv_lshl_add_u32 {t(4)}, {t(1)}, 8, {t(4)}\nv_lshl_add_u32 v{vHST}, {t(2)}, 4, {t(4)}")
    p(f"s_mul_i32 s5, s{sS2}, 48\ns_lshr_b32 s6, s{sFA}, 5\ns_add_u32 s6, s6, s5\ns_lshl_b32 s6, s6, 11\ns_add_u32 s{sHA}, s6, {WS_H}")
    p(f"s_lshr_b32 s6, s{sFB}, 5\ns_add_u32 s6, s6, s5\ns_lshl_b32 s6, s6, 11\ns_add_u32 s{sHB}, s6, {WS_H}")
    p(f"v_and_b32 {t(4)}, 1, v0\nv_lshlrev_b32 {t(4)}, 31, {t(4)}\nv_or_b32 v{vSGN}, 0x3f800000, {t(4)}")
    p(f"v_cmp_eq_u32 vcc, 0, {t(0)}\nv_mov_b32 {t(4)}, {hx(-640.0)}\nv_cndmask_b32 v{vDC}, 0, {t(4)}, vcc")
    p(f"v_lshlrev_b32 {t(4)}, 4, {t(1)}\ns_add_u32 s5, s{sM0X}, 12032\nv_add_u32 v{vSTA}, s5, {t(4)}")
    p(f"v_mov_b32 v{vSUM}, 0\nv_mov_b32 v{vSQ}, 0")

    def gen_table(sT, base):
        p(f"v_and_b32 {t(0)}, 15, v0\ns_lshl_b32 s5, s{sT}, 4\nv_add_u32 {t(0)}, s5, {t(0)}")
        p(f"v_cmp_ge_u32 vcc, 320, {t(0)}\nv_cndmask_b32 {t(6)}, 0, -1, vcc")
        p(f"v_cvt_f32_u32 {t(1)}, {t(0)}\nv_mul_f32 {t(1)}, {hx(1.0 / 640)}, {t(1)}")
        p(f"v_lshrrev_b32 {t(2)}, 5, v0\nv_lshlrev_b32 {t(2)}, 3, {t(2)}\ns_mul_i32 s5, s{sW}, 80\nv_add_u32 {t(2)}, s5, {t(2)}")
        p(f"v_mul_u32_u24 {t(2)}, {t(2)}, {t(0)}\nv_cvt_f32_u32 {t(2)}, {t(2)}\nv_mul_f32 {t(2)}, {hx(1.0 / 640)}, {t(2)}")
        p(f"v_fract_f32 {t(2)}, {t(2)}")
        p(f"v_bfe_u32 {t(3)}, v0, 4, 1\nv_cvt_f32_u32 {t(3)}, {t(3)}\nv_fmac_f32 {t(2)}, {hx(0.25)}, {t(3)}")
        p(f"v_mul_f32 {t(4)}, {hx(16.0)}, {t(1)}\nv_fract_f32 {t(4)}, {t(4)}")
        p(f"s_mul_i32 s5, s{sW}, 5120\nv_add_u32 {t(5)}, s5, v{vL16}")
        for tt in range(5):
            a = vXT + 16 * (tt & 1)
            p(f"v_cos_f32 v{a}, {t(2)}")
            p(f"v_add_f32 v{a + 1}, {t(2)}, {t(1)}")
            for j in range(1, 8):
                if j < 7:
                    p(f"v_add_f32 v{a + j + 1}, v{a + j}, {t(1)}")
                p(f"v_cos_f32 v{a + j}, v{a + j}")
            p(f"v_add_f32 {t(2)}, {t(2)}, {t(4)}")
            for j in range(4):
                p(f"v_cvt_pk_bf16_f32 v{a + 8 + j}, v{a + 2 * j}, v{a + 2 * j + 1}")
            for j in range(4):
                p(f"v_and_b32 v{a + 8 + j}, {t(6)}, v{a + 8 + j}")
            p(f"ds_write_b128 {t(5)}, {vr(a + 8)} offset:{base + tt * 1024}")

    gen_table(sT0, TAB)
    p(f"s_cmp_eq_u32 s{sT1}, 0\ns_cbranch_scc1 K1_notab1")
    p.opt_begin()
    gen_table(sT1, TAB + 20480)
    p.opt_end()
    p("K1_notab1:")

    p(f"v_and_b32 {t(0)}, 31, v0\nv_cvt_f32_u32 {t(1)}, {t(0)}\nv_mul_f32 {t(1)}, {hx(1.0 / 2048)}, {t(1)}")
    p(f"v_lshrrev_b32 {t(2)}, 5, v0\nv_lshlrev_b32 {t(2)}, 8, {t(2)}\nv_add_u32 {t(2)}, s{sS2}, {t(2)}\nv_cvt_f32_u32 {t(2)}, {t(2)}")
    p(f"v_and_b32 {t(3)}, 1, v0\nv_mul_u32_u24 {t(3)}, 0x8000, {t(3)}\nv_lshl_or_b32 {t(3)}, {t(3)}, 16, {t(3)}")
    for j in range(8):
        s1 = 8 * (j >> 2) + (j & 3)
        p(f"v_add_f32 {t(4)}, {hx(64.0 * s1)}, {t(2)}\nv_mul_f32 {t(4)}, {t(4)}, {t(1)}\nv_fract_f32 {t(4)}, {t(4)}")
        p(f"v_cos_f32 {t(8 + j)}, {t(4)}\nv_sin_f32 {t(16 + j)}, {t(4)}")
    for j in range(4):
        p(f"v_cvt_pk_bf16_f32 v{vC1 + j}, {t(8 + 2 * j)}, {t(9 + 2 * j)}")
        p(f"v_cvt_pk_bf16_f32 v{vC1 + 8 + j}, {t(16 + 2 * j)}, {t(17 + 2 * j)}")
    for j in range(4):
        p(f"v_xor_b32 v{vC1 + 4 + j}, {t(3)}, v{vC1 + j}")
        p(f"v_xor_b32 v{vC1 + 12 + j}, {t(3)}, v{vC1 + 8 + j}")

    p(f"s_lshl_b32 s3, s2, 2\ns_add_u32 s3, s3, s{sW}\ns_cmp_ge_u32 s3, 840\ns_cbranch_scc1 K1_noit")
    p.opt_begin()
    p(f"s_mul_hi_u32 s5, s3, {(2**32 + 39) // 40}\ns_mul_i32 s6, s5, 40\ns_sub_u32 s6, s3, s6")
    p(f"v_and_b32 {t(0)}, 15, v0\ns_lshl_b32 s6, s6, 4\nv_add_u32 {t(0)}, s6, {t(0)}")
    p(f"v_lshrrev_b32 {t(1)}, 4, v0\nv_lshlrev_b32 {t(1)}, 2, {t(1)}\ns_lshl_b32 s5, s5, 4\nv_add_u32 {t(1)}, s5, {t(1)}")
    a1 = 1.0 / (S * D)
    p(f"v_mov_b32 {t(2)}, {hx(2 * a1)}\nv_mov_b32 {t(3)}, {hx(a1)}")
    for r in range(4):
        p(f"v_add_u32 {t(4)}, {r}, {t(1)}")
        p(f"v_mul_u32_u24 {t(5)}, {t(4)}, {t(0)}\nv_cvt_f32_u32 {t(5)}, {t(5)}\nv_mul_f32 {t(5)}, {hx(1.0 / 640)}, {t(5)}")
        p(f"v_fract_f32 {t(5)}, {t(5)}\nv_cos_f32 {t(6)}, {t(5)}\nv_sin_f32 {t(7)}, {t(5)}")
        p(f"v_cmp_eq_u32 vcc, 0, {t(4)}\nv_cndmask_b32 {t(8)}, {t(2)}, {t(3)}, vcc")
        p(f"v_cmp_eq_u32 vcc, 320, {t(4)}\nv_cndmask_b32 {t(8)}, {t(8)}, {t(3)}, vcc")
        p(f"v_cmp_ge_u32 vcc, 320, {t(4)}\nv_cndmask_b32 {t(8)}, 0, {t(8)}, vcc")
        p(f"v_mul_f32 {t(6)}, {t(6)}, {t(8)}\nv_mul_f32 {t(7)}, {t(7)}, {t(8)}")
        p(f"v_cvt_pk_bf16_f32 {t(12 + r)}, {t(6)}, -{t(7)}")
    p(f"s_lshl_b32 s3, s3, 10\ns_add_u32 s3, s3, {WS_IT}")
    p(f"buffer_store_dwordx4 {vr(vT + 12)}, v{vL16}, {sr(SWS)}, s3 offen")
    p.opt_end()
    p("K1_noit:")

    p.wait_lds()
    p("s_barrier")

    A1, A2 = vACC, vACC + 16

    def x_reads(sl):
        p.wait_tag(('x', sl))
        for tt in range(4):
            off = (sl % 3) * 4096
            p(f"ds_read_b128 {vr(vXT + 16 * (sl & 1) + 4 * tt)}, v{vXR + tt} offset:{off}")
        for tt in range(4):
            off = (sl % 3) * 4096
            p(f"ds_read_b128 {ar(16 * sl + 4 * tt)}, v{vXR + tt} offset:{off}")

    def tab_read(k, base):
        p(f"ds_read_b128 {vr(vTB + 4 * (k % 4))}, v{vL16} offset:{base + (k % 20) * 1024}")

    x_reads(0)
    for sl in range(10):
        for tt in range(4):
            tab_read(4 * sl + tt, TAB)
        if sl + 1 < 10:
            pass
        xb = vXT + 16 * (sl & 1)
        for j in range(16):
            p(f"v_dot2c_f32_bf16 v{vSUM}, s{sONE}, v{xb + j}")
            p(f"v_dot2c_f32_bf16 v{vSQ}, v{xb + j}, v{xb + j}")
        p.wait_lds()
        if sl + 3 < 10:
            x_dma(sl + 3)
        if sl < 8:
            ring_dma(sl)
        if sl + 1 < 10:
            x_reads(sl + 1)
        for tt in range(4):
            k = 4 * sl + tt
            acc = A1 if k < 20 else A2
            c = "0" if k in (0, 20) else vr(acc, 16)
            p(f"v_mfma_f32_32x32x16_bf16 {vr(acc, 16)}, {vr(xb + 4 * tt)}, {vr(vTB + 4 * tt)}, {c}")

    p(f"v_mov_b32 {t(0)}, v{vSUM}\nv_mov_b32 {t(1)}, v{vSQ}")
    p(f"v_permlane32_swap_b32 {t(0)}, v{vSUM}\nv_permlane32_swap_b32 {t(1)}, v{vSQ}")
    p(f"v_add_f32 {t(0)}, {t(0)}, v{vSUM}\nv_add_f32 {t(1)}, {t(1)}, v{vSQ}")
    p(f"v_mul_f32 {t(0)}, {hx(1.0 / 640)}, {t(0)}\nv_mul_f32 {t(1)}, {hx(1.0 / 640)}, {t(1)}")
    p(f"v_fma_f32 {t(1)}, -{t(0)}, {t(0)}, {t(1)}\nv_max_f32 {t(1)}, 0, {t(1)}")
    p(f"v_cvt_pk_bf16_f32 {t(2)}, {t(0)}, {t(1)}")
    p(f"v_lshlrev_b32 {t(0)}, 16, {t(2)}\nv_and_b32 {t(1)}, 0xffff0000, {t(2)}")
    p(f"v_add_f32 {t(1)}, {hx(1e-5)}, {t(1)}\nv_cvt_pk_bf16_f32 {t(1)}, {t(1)}, {t(1)}\nv_and_b32 {t(1)}, 0xffff0000, {t(1)}")
    p(f"v_sqrt_f32 {t(1)}, {t(1)}\nv_cvt_pk_bf16_f32 {t(1)}, {t(1)}, {t(1)}\nv_and_b32 {t(1)}, 0xffff0000, {t(1)}")
    p(f"v_rcp_f32 {t(1)}, {t(1)}")
    p(f"v_sub_f32 v{vNM}, 0, {t(0)}\nv_mul_f32 v{vR2}, {t(1)}, {t(1)}")
    p(f"v_and_b32 {t(2)}, 31, v0\nv_lshlrev_b32 {t(2)}, 2, {t(2)}\ns_add_u32 s5, s{sM0X}, 12032\nv_add_u32 {t(2)}, s5, {t(2)}")
    p(f"ds_write2_b32 {t(2)}, {t(1)}, {t(0)} offset0:0 offset1:32")
    p.wait_lds()
    for a in range(4):
        p(f"ds_read_b128 {vr(vRR + 4 * a)}, v{vSTA} offset:{32 * a}")
    p.wait_tag('wd')
    p.wait_lds()
    p("s_barrier")

    def dft_epilogue(sT, ex, first):
        for i in range(16):
            p(f"v_fmac_f32 v{A1 + i}, v{vSGN}, v{A2 + i}")
        if first:
            p(f"s_cmp_lg_u32 s{sT}, 0\ns_cbranch_scc1 K1_nodc")
            p.opt_begin()
            for a in range(4):
                p(f"ds_read_b128 {vr(vT + 4 * a)}, v{vSTA} offset:{128 + 32 * a}")
            for i in range(16):
                p(f"v_fmac_f32 v{A1 + i}, v{vDC}, {t(i)}")
            p.opt_end()
            p("K1_nodc:")
        for i in range(16):
            p(f"v_mul_f32 v{A1 + i}, v{A1 + i}, v{vRR + i}")
        for j in range(8):
            p(f"v_cvt_pk_bf16_f32 {t(j)}, v{A1 + 2 * j}, v{A1 + 2 * j + 1}")
        P_, Q_ = vACC + 32, vACC + 48
        p(f"v_mfma_f32_32x32x16_bf16 {vr(P_, 16)}, {vr(vC1)}, {vr(vT)}, 0")
        p(f"v_mfma_f32_32x32x16_bf16 {vr(Q_, 16)}, {vr(vC1 + 8)}, {vr(vT)}, 0")
        p(f"v_mfma_f32_32x32x16_bf16 {vr(P_, 16)}, {vr(vC1 + 4)}, {vr(vT + 4)}, {vr(P_, 16)}")
        p(f"v_mfma_f32_32x32x16_bf16 {vr(Q_, 16)}, {vr(vC1 + 12)}, {vr(vT + 4)}, {vr(Q_, 16)}")
        for q in range(8):
            p(f"v_permlane16_swap_b32 v{P_ + 2 * q}, v{P_ + 2 * q + 1}")
        for q in range(8):
            p(f"v_permlane16_swap_b32 v{Q_ + 2 * q}, v{Q_ + 2 * q + 1}")
        for q in range(8):
            p(f"v_add_f32 v{P_ + 2 * q}, v{P_ + 2 * q}, v{Q_ + 2 * q + 1}")
            p(f"v_sub_f32 v{P_ + 2 * q + 1}, v{P_ + 2 * q + 1}, v{Q_ + 2 * q}")
        for q in range(8):
            p(f"v_cvt_pk_bf16_f32 {t(8 + q)}, v{P_ + 2 * q}, v{P_ + 2 * q + 1}")
            p(f"ds_write_b32 v{vEXW}, {t(8 + q)} offset:{ex + (8 * (q >> 1) + 2 * (q & 1)) * 256}")
        p.wait_lds()
        p("s_barrier")
        p(f"s_lshl_b32 s5, s{sW}, 11\nv_add_u32 {t(16)}, s5, v{vL16}")
        for e in range(2):
            p(f"ds_read_b128 {vr(vT + 20 + 4 * e)}, {t(16)} offset:{ex + e * 1024}")
        p(f"s_lshl_b32 s5, s{sT}, 4\ns_add_u32 s5, s5, s{sRB}\ns_lshl_b32 s5, s5, 8\ns_add_u32 s5, s5, {WS_T}")
        p(f"s_add_u32 s6, s5, {4 * 86016}")
        p(f"buffer_store_dwordx4 {vr(vT + 20)}, v{vTST}, {sr(SWS)}, s5 offen")
        p(f"buffer_store_dwordx4 {vr(vT + 24)}, v{vTST}, {sr(SWS)}, s6 offen")

    p(f"s_cmp_ge_u32 s2, 240\ns_cbranch_scc1 K1_nowd")
    p.opt_begin()
    p(f"v_lshrrev_b32 {t(0)}, 5, v0\nv_lshlrev_b32 {t(0)}, 4, {t(0)}\nv_bfe_u32 {t(1)}, v0, 4, 1\nv_lshl_add_u32 {t(0)}, {t(1)}, 2, {t(0)}")
    p(f"v_bfe_u32 {t(1)}, v0, 2, 2\nv_add_u32 {t(0)}, {t(0)}, {t(1)}\nv_lshlrev_b32 {t(0)}, 8, {t(0)}")
    p(f"v_and_b32 {t(1)}, 3, v0\nv_lshl_add_u32 {t(0)}, {t(1)}, 3, {t(0)}\ns_lshl_b32 s5, s{sW}, 6\ns_add_u32 s5, s5, {MISC}\nv_add_u32 {t(0)}, s5, {t(0)}")
    for jt in range(2):
        for q in range(2):
            p(f"ds_read_b64_tr_b16 {vr(vT + 4 + 4 * jt + 2 * q, 2)}, {t(0)} offset:{jt * 32 + q * 2048}")
    p(f"s_mul_i32 s5, s{sT32}, 40\ns_lshl_b32 s6, s{sC5}, 3\ns_add_u32 s5, s5, s6\ns_lshl_b32 s6, s{sW}, 1\ns_add_u32 s5, s5, s6")
    p(f"s_lshl_b32 s5, s5, 10\ns_add_u32 s5, s5, {WS_WD}")
    for jt in range(2):
        p(f"buffer_store_dwordx4 {vr(vT + 4 + 4 * jt)}, v{vL16}, {sr(SWS)}, s5 offen offset:{jt * 1024}")
    p.opt_end()
    p("K1_nowd:")

    dft_epilogue(sT0, EX0, True)

    p(f"s_cmp_eq_u32 s{sT1}, 0\ns_cbranch_scc1 K1_nou1")
    p.opt_begin()
    for k in range(3):
        tab_read(k, TAB + 20480)
    for k in range(40):
        if k + 3 < 40:
            tab_read(k + 3, TAB + 20480)
        acc = A1 if k < 20 else A2
        c = "0" if k in (0, 20) else vr(acc, 16)
        p(f"v_mfma_f32_32x32x16_bf16 {vr(acc, 16)}, {ar(4 * k)}, {vr(vTB + 4 * (k % 4))}, {c}")
    dft_epilogue(sT1, EX1, False)
    p.opt_end()
    p("K1_nou1:")

    def barrier_stage(j):
        p.wait_tag(('w', j))
        p("s_barrier")
        if j >= 2:
            ring_dma(j + 6)

    def readsA(k, tile):
        st, tt = k >> 1, k & 1
        fr = vFR + 16 * (k & 1) + 4 * tile
        for q in range(2):
            p(f"ds_read_b64_tr_b16 {vr(fr + 2 * q, 2)}, v{vRA} offset:{(st % 8) * 8192 + tt * 4096 + tile * 512 + q * 256}")

    def readsCA(k):
        st, tt = k >> 1, k & 1
        for q in range(2):
            p(f"ds_read_b64_tr_b16 {vr(vCF + 4 * (k & 1) + 2 * q, 2)}, v{vCA} offset:{(st % 8) * 8192 + tt * 4096 + q * 256}")

    barrier_stage(0)
    for tile in range(4):
        readsA(0, tile)
    readsCA(0)
    for k in range(40):
        if k + 1 < 40 and (k + 1) % 2 == 0:
            barrier_stage((k + 1) >> 1)
        for tile in range(4):
            acc = vACC + 16 * tile
            c = "0" if k == 0 else vr(acc, 16)
            p(f"v_mfma_f32_32x32x16_bf16 {vr(acc, 16)}, {vr(vFR + 16 * (k & 1) + 4 * tile)}, {ar(4 * k)}, {c}")
            if k + 1 < 40:
                readsA(k + 1, tile)
        c = "0" if k == 0 else vr(vCS)
        p(f"v_mfma_f32_16x16x32_bf16 {vr(vCS)}, {vr(vCF + 4 * (k & 1))}, {vr(vIND)}, {c}")
        if k + 1 < 40:
            readsCA(k + 1)

    def cs_publish(base):
        p(f"v_and_b32 {t(0)}, 15, v0\nv_lshrrev_b32 {t(1)}, 4, v0\nv_lshlrev_b32 {t(1)}, 4, {t(1)}\nv_lshl_add_u32 {t(1)}, {t(0)}, 6, {t(1)}")
        p(f"s_lshl_b32 s5, s{sW}, 7\nv_add_u32 {t(1)}, s5, {t(1)}\nv_add_u32 {t(2)}, 2048, v{vL16}")
        p(f"v_cmp_gt_u32 vcc, 2, {t(0)}\nv_cndmask_b32 {t(1)}, {t(2)}, {t(1)}, vcc")
        p(f"ds_write_b128 {t(1)}, {vr(vCS)} offset:{base}")
        p.wait_lds()
        p("s_barrier")

    def glu_epilogue(G, U, csg, csu, soff, two=False):
        p(f"v_lshrrev_b32 {t(31)}, 5, v0\nv_lshlrev_b32 {t(31)}, 4, {t(31)}")
        for acc, cs in ((G, csg), (U, csu)):
            for part in range(2 if two else 1):
                for a in range(4):
                    p(f"ds_read_b128 {vr(vT + 4 * a)}, {t(31)} offset:{cs + part * 256 + 32 * a}")
                for i in range(16):
                    p(f"v_fmac_f32 v{acc + i}, v{vNM}, {t(i)}")
        for i in range(16):
            p(f"v_max_f32 v{G + i}, 0, v{G + i}\nv_mul_f32 v{U + i}, v{vR2}, v{U + i}")
        for i in range(16):
            p(f"v_mul_f32 v{G + i}, v{G + i}, v{U + i}")
        for j in range(8):
            p(f"v_cvt_pk_bf16_f32 {t(16 + j)}, v{G + 2 * j}, v{G + 2 * j + 1}")
        for u in range(2):
            p(f"buffer_store_dwordx4 {vr(vT + 16 + 4 * u)}, v{vHST}, {sr(SWS)}, {soff} offen offset:{u * 512}")

    cs_publish(CSX)
    glu_epilogue(vACC, vACC + 32, CSX, CSX + 256, f"s{sHA}")
    p(f"s_add_u32 s{sHA}, s{sHA}, 2048")
    glu_epilogue(vACC + 16, vACC + 48, CSX + 128, CSX + 384, f"s{sHA}")

    def readsB(k, mat):
        st, tt = 20 + (k >> 2), k & 3
        fr = vFR + 8 * (k & 1) + 4 * mat
        for q in range(2):
            p(f"ds_read_b64_tr_b16 {vr(fr + 2 * q, 2)}, v{vRB} offset:{(st % 8) * 8192 + tt * 2048 + mat * 1024 + q * 256}")

    def readsCB(k2):
        st, tt = 20 + (k2 >> 1), (k2 & 1) * 2
        for q in range(2):
            p(f"ds_read_b64_tr_b16 {vr(vCF + 4 * (k2 & 1) + 2 * q, 2)}, v{vCB_} offset:{(st % 8) * 8192 + tt * 2048 + q * 256}")

    barrier_stage(20)
    readsB(0, 0)
    readsB(0, 1)
    readsCB(0)
    for k in range(40):
        if k + 1 < 40 and (k + 1) % 4 == 0:
            barrier_stage(20 + ((k + 1) >> 2))
        for mat in range(2):
            acc = vACC + 16 * mat
            c = "0" if k == 0 else vr(acc, 16)
            p(f"v_mfma_f32_32x32x16_bf16 {vr(acc, 16)}, {vr(vFR + 8 * (k & 1) + 4 * mat)}, {ar(4 * k)}, {c}")
            if k + 1 < 40:
                readsB(k + 1, mat)
        if k & 1:
            k2 = k >> 1
            c = "0" if k2 == 0 else vr(vCS)
            p(f"v_mfma_f32_16x16x32_bf16 {vr(vCS)}, {vr(vCF + 4 * (k2 & 1))}, {vr(vIND)}, {c}")
            if k2 + 1 < 20:
                readsCB(k2 + 1)
    cs_publish(CSX + 512)
    glu_epilogue(vACC, vACC + 16, CSX + 512, CSX + 512 + 128, f"s{sHB}", two=True)
    p(f"{end}:")
    p("s_endpgm")


LDS2 = 16384


def k2(p):
    end = "K2_end"
    prologue(p, 168, end)
    sQ, sT, sK1 = 61, 62, 63
    vL16, vWA, vEXW = 2, 3, 4
    vT = 8
    vIN = 24
    vIN2 = 40
    vWR, vWI = 56, 72
    vX = 88
    vY = 120
    vA = 152
    t = lambda i: f"v{vT + i}"
    p(f"s_mul_hi_u32 s{sQ}, s2, {(2**32 + 20) // 21}\ns_mul_i32 s5, s{sQ}, 21\ns_sub_u32 s{sT}, s2, s5")
    p(f"s_lshl_b32 s{sK1}, s{sQ}, 2\ns_add_u32 s{sK1}, s{sK1}, s{sW}")
    p(f"v_lshlrev_b32 v{vL16}, 4, v0")
    p(f"s_mul_i32 s5, s{sK1}, 21\ns_add_u32 s5, s5, s{sT}\ns_lshl_b32 s5, s5, 12\ns_add_u32 s5, s5, {WS_T}")
    for k in range(4):
        p(f"buffer_load_dwordx4 {vr(vIN + 4 * k)}, v{vL16}, {sr(SWS)}, s5 offen offset:{k * 1024}")
    p(f"v_lshrrev_b32 {t(0)}, 4, v0\nv_lshlrev_b32 {t(1)}, 7, {t(0)}\nv_add_u32 {t(1)}, s{sK1}, {t(1)}\nv_mul_u32_u24 {t(1)}, 642, {t(1)}")
    p(f"v_and_b32 {t(2)}, 15, v0\ns_lshl_b32 s5, s{sT}, 4\nv_add_u32 {t(3)}, s5, {t(2)}\nv_lshl_add_u32 v{vWA}, {t(3)}, 1, {t(1)}")
    for i in range(32):
        p(f"v_mov_b32 v{vWR + i}, 0")
    for k in range(4):
        for r in range(4):
            p(f"s_mov_b32 s5, {k * 328704 + r * 20544}")
            p(f"buffer_load_short_d16_hi v{vWR + 4 * k + r}, v{vWA}, {sr(SWR)}, s5 offen")
            p(f"buffer_load_short_d16_hi v{vWI + 4 * k + r}, v{vWA}, {sr(SWI)}, s5 offen")
    p(f"v_lshlrev_b32 {t(1)}, 10, {t(0)}\nv_lshl_add_u32 {t(1)}, {t(2)}, 4, {t(1)}\ns_lshl_b32 s5, s{sW}, 2\nv_add_u32 v{vEXW}, s5, {t(1)}")
    p(f"v_cvt_f32_u32 {t(3)}, {t(2)}\nv_mul_f32 {t(3)}, {hx(1.0 / 64)}, {t(3)}")
    p(f"v_lshlrev_b32 {t(4)}, 2, {t(0)}\nv_cvt_f32_u32 {t(4)}, {t(4)}")
    for k in range(4):
        for r in range(4):
            p(f"v_add_f32 {t(5)}, {hx(16.0 * k + r)}, {t(4)}\nv_mul_f32 {t(5)}, {t(5)}, {t(3)}\nv_fract_f32 {t(5)}, {t(5)}")
            p(f"v_cos_f32 {t(6)}, {t(5)}\nv_sin_f32 {t(7)}, {t(5)}")
            for mt in range(4):
                rot = (mt * r) % 4
                c, s_ = t(6), t(7)
                lo, hi = [(c, s_), ('-' + s_, c), ('-' + c, '-' + s_), (s_, '-' + c)][rot]
                p(f"v_cvt_pk_bf16_f32 v{vA + 16 * mt + 4 * k + r}, {lo}, {hi}")
    for i in range(16):
        p(f"v_alignbit_b32 v{vIN2 + i}, v{vIN + i}, v{vIN + i}, 16")
        p(f"v_xor_b32 v{vIN2 + i}, 0x80000000, v{vIN2 + i}")

    def dft(dst, bre, bim):
        for k in range(4):
            for mt in range(4):
                for part, b in ((0, bre), (1, bim)):
                    d = dst + 16 * part + 4 * mt
                    c = "0" if k == 0 else vr(d)
                    p(f"v_mfma_f32_16x16x32_bf16 {vr(d)}, {vr(vA + 16 * mt + 4 * k)}, {vr(b + 4 * k)}, {c}")

    dft(vX, vIN, vIN2)
    for i in range(16):
        xr, xi, wr_, wi_ = f"v{vX + i}", f"v{vX + 16 + i}", f"v{vWR + i}", f"v{vWI + i}"
        a, b = t(2 * (i % 4)), t(2 * (i % 4) + 1)
        p(f"v_mul_f32 {a}, {xr}, {wr_}\nv_mul_f32 {b}, {xr}, {wi_}")
        p(f"v_fma_f32 {a}, -{xi}, {wi_}, {a}\nv_fmac_f32 {b}, {xi}, {wr_}")
        p(f"v_cvt_pk_bf16_f32 v{vY + i}, {a}, -{b}\nv_cvt_pk_bf16_f32 v{vY + 16 + i}, {b}, {a}")
    dft(vX, vY, vY + 16)
    for i in range(16):
        p(f"v_cvt_pk_bf16_f32 {t(i)}, v{vX + i}, v{vX + 16 + i}")
        p(f"ds_write_b32 v{vEXW}, {t(i)} offset:{(16 * (i >> 2) + (i & 3)) * 256}")
    p.wait_lds()
    p("s_barrier")
    p(f"s_lshl_b32 s5, s{sW}, 12\nv_add_u32 v{vWA}, s5, v{vL16}")
    for e in range(4):
        p(f"ds_read_b128 {vr(vIN + 4 * e)}, v{vWA} offset:{e * 1024}")
    p(f"v_lshrrev_b32 {t(0)}, 4, v0\ns_lshl_b32 s5, s{sW}, 4\nv_add_u32 {t(0)}, s5, {t(0)}\nv_mul_u32_u24 {t(0)}, {21 * 2048}, {t(0)}")
    p(f"v_and_b32 {t(1)}, 15, v0\nv_lshl_add_u32 {t(0)}, {t(1)}, 4, {t(0)}")
    p(f"s_lshl_b32 s5, s{sT}, 3\ns_add_u32 s5, s5, s{sQ}\ns_lshl_b32 s5, s5, 8\ns_add_u32 s5, s5, {WS_U}")
    for e in range(4):
        p(f"buffer_store_dwordx4 {vr(vIN + 4 * e)}, {t(0)}, {sr(SWS)}, s5 offen")
        if e < 3:
            p(f"s_add_u32 s5, s5, {4 * 21 * 2048}")
    p(f"{end}:")
    p("s_endpgm")


LDS3 = 86016
RS = 336


def k3(p):
    end = "K3_end"
    prologue(p, 256, end)
    sPR, sNB, sH0, sH1, sWD, sU0, sU1, sIT = 61, 62, 63, 64, 65, 66, 67, 68
    vL16 = 2
    vT = 4
    vZ = 36
    vZP = 68
    vK = 84
    t = lambda i: f"v{vT + i}"
    NST = 7
    stage = [('a', 80 + 36 * i) for i in range(4)] + [('v', 148 + 36 * i) for i in range(3)]

    def fr(st, j):
        k, b = stage[st % NST]
        return f"{k}[{b + 4 * j}:{b + 4 * j + 3}]"

    p("s_and_b32 s3, s2, 7\ns_lshr_b32 s4, s2, 3")
    p(f"s_lshr_b32 s5, s3, 1\ns_lshl_b32 s5, s5, 3\ns_and_b32 s6, s4, 7\ns_add_u32 s{sPR}, s5, s6")
    p(f"s_and_b32 s5, s3, 1\ns_lshl_b32 s5, s5, 2\ns_lshr_b32 s6, s4, 3\ns_add_u32 s{sNB}, s5, s6")
    p(f"v_lshlrev_b32 v{vL16}, 4, v0")
    p(f"s_mul_i32 s5, s{sW}, 12\ns_mul_i32 s6, s{sPR}, 96\ns_add_u32 s6, s6, s5\ns_lshl_b32 s6, s6, 11\ns_add_u32 s{sH0}, s6, {WS_H}")
    p(f"s_add_u32 s{sH1}, s{sH0}, {48 * 2048}")
    p(f"s_mul_i32 s5, s5, 40\ns_mul_i32 s7, s{sNB}, 5\ns_add_u32 s5, s5, s7\ns_lshl_b32 s5, s5, 10\ns_add_u32 s{sWD}, s5, {WS_WD}")
    p(f"s_mul_i32 s5, s{sW}, 5\ns_add_u32 s5, s5, 1\ns_mul_i32 s6, s{sPR}, 42\ns_add_u32 s6, s6, s5\ns_lshl_b32 s6, s6, 11\ns_add_u32 s{sU0}, s6, {WS_U}")
    p(f"s_add_u32 s{sU1}, s{sU0}, {21 * 2048}")
    p(f"s_mul_i32 s5, s5, 40\ns_add_u32 s5, s5, s7\ns_lshl_b32 s5, s5, 10\ns_add_u32 s{sIT}, s5, {WS_IT}")

    NG = 12

    def loads(u):
        if u < NG:
            a, b0, b1, da, db = sWD, sH0, sH1, 40960, 2048
        else:
            a, b0, b1, da, db = sIT, sU0, sU1, 40960, 2048
        if u == 17:
            p(f"s_sub_u32 s{a}, s{a}, {6 * 40960}\ns_sub_u32 s{b0}, s{b0}, {6 * 2048}\ns_sub_u32 s{b1}, s{b1}, {6 * 2048}")
        for j in range(2):
            p(f"buffer_load_dwordx4 {fr(u, 5 + j)}, v{vL16}, {sr(SWS)}, s{b0} offen offset:{j * 1024}")
        for j in range(2):
            p(f"buffer_load_dwordx4 {fr(u, 7 + j)}, v{vL16}, {sr(SWS)}, s{b1} offen offset:{j * 1024}")
        for j in range(4):
            p(f"buffer_load_dwordx4 {fr(u, j)}, v{vL16}, {sr(SWS)}, s{a} offen offset:{j * 1024}")
        p(f"s_add_u32 s5, s{a}, 4096")
        p(f"buffer_load_dwordx4 {fr(u, 4)}, v{vL16}, {sr(SWS)}, s5 offen")
        p(f"s_add_u32 s{a}, s{a}, {da}\ns_add_u32 s{b0}, s{b0}, {db}\ns_add_u32 s{b1}, s{b1}, {db}")

    for u in range(NST - 1):
        loads(u)

    p(f"v_and_b32 {t(0)}, 15, v0\nv_lshlrev_b32 {t(0)}, 6, {t(0)}\ns_lshl_b32 s5, s{sPR}, 1\nv_add_u32 {t(0)}, s5, {t(0)}")
    p(f"v_cvt_f32_u32 {t(0)}, {t(0)}\nv_mul_f32 {t(0)}, {hx(1.0 / 2048)}, {t(0)}\nv_add_f32 {t(1)}, {hx(1.0 / 2048)}, {t(0)}")
    p(f"v_lshrrev_b32 {t(2)}, 4, v0\nv_lshlrev_b32 {t(2)}, 2, {t(2)}\nv_cvt_f32_u32 {t(2)}, {t(2)}")
    for e in range(2):
        for k in range(2):
            for r in range(4):
                p(f"v_add_f32 {t(3)}, {hx(16.0 * k + r)}, {t(2)}\nv_mul_f32 {t(3)}, {t(3)}, {t(e)}\nv_fract_f32 {t(3)}, {t(3)}")
                p(f"v_cos_f32 {t(4)}, {t(3)}\nv_sin_f32 {t(5)}, {t(3)}")
                for hf in range(2):
                    n = hf and (r & 1)
                    c, mc = (t(4), '-' + t(4)) if not n else ('-' + t(4), t(4))
                    s_, ms = (t(5), '-' + t(5)) if not n else ('-' + t(5), t(5))
                    b = vK + 32 * e + 16 * hf + 4 * k + r
                    p(f"v_cvt_pk_bf16_f32 v{b}, {c}, {ms}\nv_cvt_pk_bf16_f32 v{b + 8}, {s_}, {c}")

    def main_mfma(u, bsrc, first):
        for st in range(4):
            for dt in range(5):
                acc = ar(4 * (4 * dt + st))
                c = "0" if first else acc
                p(f"v_mfma_f32_16x16x32_bf16 {acc}, {fr(u, dt)}, {bsrc(st)}, {c}")

    def inv_unit(u):
        for k in range(2):
            for st in range(4):
                e, hf = st >> 1, st & 1
                for part in range(2):
                    d = vr(vZ + 8 * st + 4 * part)
                    c = "0" if k == 0 else d
                    p(f"v_mfma_f32_16x16x32_bf16 {d}, {fr(u, 5 + 2 * e + k)}, {vr(vK + 32 * e + 16 * hf + 8 * part + 4 * k)}, {c}")
        for st in range(4):
            for r in range(4):
                p(f"v_cvt_pk_bf16_f32 v{vZP + 4 * st + r}, v{vZ + 8 * st + r}, v{vZ + 8 * st + 4 + r}")
        main_mfma(u, lambda st: vr(vZP + 4 * st), False)

    for u in range(17):
        if u + NST - 1 < 17:
            loads(u + NST - 1)
        elif u + NST - 1 == 17:
            p(f"s_cmp_lg_u32 s{sW}, 0\ns_cbranch_scc1 K3_nold")
            p.opt_begin()
            loads(17)
            p.opt_end()
            p("K3_nold:")
        if u < NG:
            main_mfma(u, lambda st: fr(u, 5 + st), u == 0)
        else:
            inv_unit(u)
    p(f"s_cmp_lg_u32 s{sW}, 0\ns_cbranch_scc1 K3_nou")
    p.opt_begin()
    inv_unit(17)
    p.opt_end()
    p("K3_nou:")

    p(f"v_and_b32 {t(0)}, 15, v0\nv_mul_u32_u24 {t(0)}, {RS}, {t(0)}\nv_lshrrev_b32 {t(1)}, 4, v0\nv_lshl_add_u32 {t(0)}, {t(1)}, 4, {t(0)}")
    p(f"s_mul_i32 s5, s{sW}, {64 * RS}\nv_add_u32 {t(0)}, s5, {t(0)}")
    p(f"s_lshl_b32 s5, s{sW}, 6\nv_add_u32 {t(1)}, s5, v0")
    p(f"s_mul_i32 s6, s{sNB}, 160\ns_mul_i32 s7, s{sPR}, 2560\ns_add_u32 s6, s6, s7")
    vLA, vGAo, vXI = vZ, vZ + 4, vZ + 8
    for it in range(3):
        p(f"v_add_u32 {t(2)}, {256 * it}, {t(1)}\nv_mul_u32_u24 {t(3)}, 6554, {t(2)}\nv_lshrrev_b32 {t(3)}, 16, {t(3)}")
        p(f"v_mul_u32_u24 {t(4)}, 10, {t(3)}\nv_sub_u32 {t(4)}, {t(2)}, {t(4)}")
        p(f"v_mul_u32_u24 {t(5)}, {RS}, {t(3)}\nv_lshl_add_u32 v{vLA + it}, {t(4)}, 5, {t(5)}")
        p(f"v_and_b32 {t(5)}, 31, {t(3)}\nv_lshlrev_b32 {t(5)}, 6, {t(5)}\nv_lshrrev_b32 {t(6)}, 5, {t(3)}\nv_add_u32 {t(5)}, {t(5)}, {t(6)}")
        p(f"v_mul_u32_u24 {t(5)}, 1280, {t(5)}\nv_lshl_add_u32 {t(5)}, {t(4)}, 4, {t(5)}\nv_add_u32 v{vGAo + it}, s6, {t(5)}")
    for it in range(2):
        p(f"buffer_load_dwordx4 {vr(vXI + 4 * it)}, v{vGAo + it}, {sr(SX)}, 0 offen")
    p(f"s_cmp_ge_u32 s{sW}, 2\ns_cbranch_scc1 K3_nox")
    p.opt_begin()
    p(f"buffer_load_dwordx4 {vr(vXI + 8)}, v{vGAo + 2}, {sr(SX)}, 0 offen")
    p.opt_end()
    p("K3_nox:")
    for st in range(4):
        for dt in range(5):
            p(f"ds_write_b128 {t(0)}, {ar(4 * (4 * dt + st))} offset:{st * 16 * RS + dt * 64}")
    p.wait_lds()
    p("s_barrier")

    def fin(it):
        b = 148
        for w in range(4):
            for hh in range(2):
                p(f"ds_read_b128 {vr(b + 8 * w + 4 * hh)}, v{vLA + it} offset:{w * 64 * RS + 16 * hh}")
        for j in range(4):
            p(f"v_lshlrev_b32 {t(8 + 2 * j)}, 16, v{vXI + 4 * it + j}\nv_and_b32 {t(9 + 2 * j)}, 0xffff0000, v{vXI + 4 * it + j}")
        for w in range(4):
            for j in range(8):
                p(f"v_add_f32 {t(8 + j)}, {t(8 + j)}, v{b + 8 * w + j}")
        for j in range(4):
            p(f"v_cvt_pk_bf16_f32 {t(16 + 4 * (it & 1) + j)}, {t(8 + 2 * j)}, {t(9 + 2 * j)}")
        p(f"buffer_store_dwordx4 {vr(vT + 16 + 4 * (it & 1))}, v{vGAo + it}, {sr(SO)}, 0 offen")

    fin(0)
    fin(1)
    p(f"s_cmp_ge_u32 s{sW}, 2\ns_cbranch_scc1 {end}")
    p.opt_begin()
    fin(2)
    p.opt_end()
    p(f"{end}:")
    p("s_endpgm")


def build():
    out = []
    out.append(f"; @launch kernel=gf1_kernel grid=(256,1,1) block=(256,1,1) lds={LDS1}")
    out.append(f"; @launch kernel=gf2_kernel grid=(168,1,1) block=(256,1,1) lds={LDS2}")
    out.append(f"; @launch kernel=gf3_kernel grid=(256,1,1) block=(256,1,1) lds={LDS3}")
    out.append('.amdgcn_target "amdgcn-amd-amdhsa--gfx950"\n.text')
    for name, fn, vg, acc in (("gf1_kernel", k1, 512, 256), ("gf2_kernel", k2, 256, 256), ("gf3_kernel", k3, 512, 256)):
        p = Prog()
        fn(p)
        out.append(f".globl {name}\n.p2align 8\n.type {name},@function\n{name}:")
        out.append(p.text())
        out.append(kd_block(name, vg, acc))
    return "\n".join(out)


if __name__ == "__main__":
    dst = sys.argv[1] if len(sys.argv) > 1 else f"cdna_kernels/{NAME}.s"
    open(dst, "w").write(build())
```

```python
import re

_RANGE = re.compile(r'^([vas])\[(\d+):(\d+)\]$')
_SINGLE = re.compile(r'^([vas])(\d+)$')


def regs_of(tok):
    t = tok.strip()
    if t.startswith('-'):
        t = t[1:]
    if t.startswith('|') and t.endswith('|'):
        t = t[1:-1]
    if t.startswith('abs(') and t.endswith(')'):
        t = t[4:-1]
    m = _RANGE.match(t)
    if m:
        return [f"{m.group(1)}{i}" for i in range(int(m.group(2)), int(m.group(3)) + 1)]
    m = _SINGLE.match(t)
    if m:
        return [t]
    if t == 'vcc':
        return ['vcc']
    if t in ('vcc_lo', 'vcc_hi'):
        return ['vcc']
    if t in ('exec', 'exec_lo', 'exec_hi'):
        return ['exec']
    if t == 'm0':
        return ['m0']
    return []


def split_ops(s):
    out, depth, cur = [], 0, ''
    for ch in s:
        if ch in '[(':
            depth += 1
        if ch in '])':
            depth -= 1
        if ch == ',' and depth == 0:
            out.append(cur.strip())
            cur = ''
        else:
            cur += ch
    if cur.strip():
        out.append(cur.strip())
    return out


TRANS = ('v_exp_', 'v_log_', 'v_rcp_', 'v_rsq_', 'v_sqrt_', 'v_sin_', 'v_cos_')
NODST_S = ('s_cmp', 's_cbranch', 's_branch', 's_waitcnt', 's_barrier', 's_nop', 's_endpgm', 's_sleep',
           's_setprio', 's_bitcmp', 's_setreg')


class Ins:
    __slots__ = ('text', 'op', 'reads', 'writes', 'kind', 'tag', 'passes', 'srcc', 'ab', 'wide', 'opt', 'waitfor')

    def __init__(self, text, tag=None):
        self.text = text
        self.tag = tag
        self.opt = None
        self.waitfor = None
        self.passes = 0
        self.srcc = []
        self.ab = []
        self.wide = False
        s = text.split(';')[0].strip()
        if s.endswith(':') or s.startswith('.') or not s:
            self.op = ''
            self.kind = 'label' if s.endswith(':') else 'dir'
            self.reads, self.writes = [], []
            return
        parts = s.split(None, 1)
        op = self.op = parts[0]
        rest = parts[1] if len(parts) > 1 else ''
        ops = split_ops(rest)
        mods = ''
        if ops:
            lp = ops[-1].split(None, 1)
            if len(lp) > 1 and not ops[-1].startswith('hwreg'):
                ops[-1], mods = lp[0], lp[1]
        R = [regs_of(o) for o in ops]
        flat = lambda L: [r for x in L for r in x]
        rd, wr = [], []
        if op.startswith('v_mfma'):
            self.kind = 'mfma'
            wr = R[0]
            rd = flat(R[1:])
            self.ab = R[1] + R[2]
            self.srcc = R[3]
            self.passes = 8 if '32x32x16' in op else 4 if '16x16x32' in op else 2 if '4x4x4' in op else None
            assert self.passes
        elif op.startswith('v_'):
            self.kind = 'valu'
            if op.startswith('v_permlane') and 'swap' in op:
                wr = R[0] + R[1]
                rd = R[0] + R[1]
            elif op.startswith(('v_add_co', 'v_sub_co', 'v_addc_co', 'v_subb_co', 'v_subrev_co')):
                wr = R[0] + R[1]
                rd = flat(R[2:])
            elif op.startswith(('v_fmac', 'v_dot2c', 'v_pk_fmac', 'v_writelane')):
                wr = R[0]
                rd = flat(R)
            elif op == 'v_nop':
                pass
            else:
                wr = R[0]
                rd = flat(R[1:])
            if 'dpp' in op or 'row_' in mods or 'quad_perm' in mods:
                self.kind = 'valu'
                self.wide = 'dpp'
                rd = rd + wr
            rd = rd + ['exec']
        elif op.startswith('ds_'):
            self.kind = 'lds'
            if op.startswith(('ds_read', 'ds_bpermute', 'ds_permute', 'ds_swizzle')):
                wr = R[0]
                rd = flat(R[1:])
            else:
                rd = flat(R)
        elif op.startswith(('buffer_', 'global_')):
            self.kind = 'vmem'
            allm = mods + ' ' + ' '.join(ops)
            if op in ('buffer_wbl2', 'buffer_inv'):
                pass
            elif 'load' in op:
                if re.search(r'\blds\b', mods):
                    rd = flat(R) + ['m0']
                    self.kind = 'dma'
                else:
                    wr = R[0]
                    rd = flat(R[1:])
                    if 'd16' in op:
                        rd = rd + wr
            elif 'atomic' in op:
                rd = flat(R)
                if 'sc0' in mods:
                    wr = R[0]
            else:
                rd = flat(R)
                if 'x4' in op or 'x3' in op:
                    self.wide = R[0] if op.startswith('buffer') else R[1]
        elif op.startswith(('s_load', 's_buffer_load', 's_memtime', 's_memrealtime')):
            self.kind = 'smem'
            wr = R[0]
            rd = flat(R[1:])
        elif op.startswith('s_'):
            self.kind = 'salu'
            if op.startswith(NODST_S):
                rd = flat(R)
            else:
                wr = R[0]
                rd = flat(R[1:])
                if 'saveexec' in op:
                    wr = wr + ['exec']
                    rd = rd + ['exec']
                if op.startswith(('s_addk', 's_mulk', 's_cmov', 's_bitset')):
                    rd = rd + wr
        else:
            raise ValueError(text)
        self.reads, self.writes = rd, wr


class Prog:
    def __init__(self):
        self.ins = []
        self._opt = None
        self._nopt = 0
        self._excl = {}

    def __call__(self, text, tag=None, junk=False):
        for line in text.split('\n'):
            line = line.strip()
            if not line:
                continue
            i = Ins(line, tag)
            if junk:
                i.writes = []
            i.opt = self._opt
            self.ins.append(i)
        return self

    def wait_tag(self, *tags):
        i = Ins('s_nop 0')
        i.kind = 'waittag'
        i.waitfor = tags
        i.opt = self._opt
        self.ins.append(i)

    def wait_lds(self):
        i = Ins('s_nop 0')
        i.kind = 'waitlds'
        i.opt = self._opt
        self.ins.append(i)

    def wait_all_vm(self):
        i = Ins('s_nop 0')
        i.kind = 'waitvm'
        i.opt = self._opt
        self.ins.append(i)

    def reset(self):
        i = Ins('s_nop 0')
        i.kind = 'reset'
        self.ins.append(i)

    def opt_begin(self, excl=None):
        assert self._opt is None
        self._nopt += 1
        self._opt = self._nopt
        if excl is not None:
            self._excl[self._opt] = excl
        return self._opt

    def opt_end(self):
        self._opt = None

    def _waits(self):
        out = []
        Q = {'vm': [], 'lg': []}

        def count_after(q, idx, cur):
            me = q[idx]['opt']
            return sum(1 for e in q[idx + 1:] if e['opt'] is None or e['opt'] == me or e['opt'] == cur)

        def live(e, cur):
            if cur is not None and e['opt'] is not None and self._excl.get(cur) == e['opt']:
                return False
            return not (cur is not None and cur in e['done'])

        def retire(name, n, cur):
            q = Q[name]
            keep = []
            for k, e in enumerate(q):
                if live(e, cur) and count_after(q, k, cur) >= n:
                    if cur is None or e['opt'] == cur:
                        continue
                    e = dict(e, done=e['done'] | {cur})
                keep.append(e)
            Q[name] = keep

        def emit(vn, ln, cur):
            parts = []
            if vn is not None:
                vn = min(vn, 63)
                parts.append(f"vmcnt({vn})")
                retire('vm', vn, cur)
            if ln is not None:
                ln = min(ln, 15)
                parts.append(f"lgkmcnt({ln})")
                retire('lg', ln, cur)
            if parts:
                w = Ins('s_waitcnt ' + ' '.join(parts))
                w.opt = cur
                out.append(w)

        def need(name, pred, cur):
            q = Q[name]
            ns = [count_after(q, k, cur) for k, e in enumerate(q) if live(e, cur) and pred(e)]
            if not ns:
                return None
            if name == 'lg' and any(e['smem'] and live(e, cur) for e in q):
                return 0
            return min(ns)

        for i in self.ins:
            if i.kind == 'reset':
                Q['vm'], Q['lg'] = [], []
                continue
            if i.kind == 'waittag':
                emit(need('vm', lambda e: e['tag'] in i.waitfor, i.opt), None, i.opt)
                continue
            if i.kind == 'waitlds':
                emit(None, 0 if need('lg', lambda e: True, i.opt) is not None else None, i.opt)
                continue
            if i.kind == 'waitvm':
                emit(0 if need('vm', lambda e: True, i.opt) is not None else None, None, i.opt)
                continue
            touched = set(i.reads) | set(i.writes)
            if touched:
                emit(need('vm', lambda e: e['regs'] & touched, i.opt), need('lg', lambda e: e['regs'] & touched, i.opt), i.opt)
            if i.op == 's_waitcnt':
                m = re.search(r'vmcnt\((\d+)\)', i.text)
                if m:
                    retire('vm', int(m.group(1)), i.opt)
                m = re.search(r'lgkmcnt\((\d+)\)', i.text)
                if m and (int(m.group(1)) == 0 or not any(e['smem'] for e in Q['lg'])):
                    retire('lg', int(m.group(1)), i.opt)
            out.append(i)
            if i.kind in ('vmem', 'dma'):
                Q['vm'].append(dict(regs=set(i.writes), tag=i.tag, opt=i.opt, smem=False, done=frozenset()))
            elif i.kind == 'lds':
                Q['lg'].append(dict(regs=set(i.writes), tag=i.tag, opt=i.opt, smem=False, done=frozenset()))
            elif i.kind == 'smem':
                Q['lg'].append(dict(regs=set(i.writes), tag=i.tag, opt=i.opt, smem=True, done=frozenset()))
        return out

    @staticmethod
    def _need(p, c):
        n = 0
        pw, cr, cw = set(p.writes), set(c.reads), set(c.writes)
        if p.kind == 'valu':
            vw = {r for r in pw if r[0] in 'va' and r != 'vcc'}
            sw = pw - vw
            if c.kind == 'mfma' and vw & cr:
                n = max(n, 2)
            if c.kind == 'valu':
                if c.op.startswith(('v_readlane', 'v_readfirstlane')) and vw & cr:
                    n = max(n, 1)
                if c.op.startswith('v_permlane') and vw & cr:
                    n = max(n, 2)
                if c.wide == 'dpp' and vw & cr:
                    n = max(n, 2)
                if sw & cr:
                    n = max(n, 4 if c.op.startswith(('v_readlane', 'v_writelane', 'v_div_fmas')) else 2)
                if p.op.startswith(TRANS) and not c.op.startswith(TRANS) and vw & cr:
                    n = max(n, 1)
            if p.op.startswith('v_dot') and vw & (cr | cw):
                same = c.op == p.op
                if not (same and not (vw & set(r for r in c.reads[len(c.writes):]))):
                    n = max(n, 3)
            if c.kind in ('vmem', 'dma') and sw & cr:
                n = max(n, 5)
            if c.kind in ('salu', 'smem') and sw & cr:
                n = max(n, 1)
            if 'exec' in pw:
                n = max(n, 5)
        if p.kind == 'mfma':
            big = {2: 5, 4: 8, 8: 12}[p.passes]
            ovl = {2: 4, 4: 6, 8: 10}[p.passes]
            if c.kind == 'mfma':
                if pw & set(c.ab):
                    n = max(n, big)
                if pw & set(c.srcc):
                    if c.srcc == p.writes and c.passes == p.passes:
                        n = max(n, 2 if p.passes == 2 else 0)
                    else:
                        n = max(n, ovl)
                elif pw & cw:
                    n = max(n, big)
            elif c.kind in ('valu', 'lds', 'vmem', 'dma'):
                if pw & (cr | cw):
                    n = max(n, big)
                if c.kind == 'valu' and set(p.srcc) & cw:
                    n = max(n, {2: 1, 4: 3, 8: 7}[p.passes])
        if p.kind == 'salu' and 'm0' in pw and 'm0' in cr and c.kind != 'salu':
            n = max(n, 1)
        if p.kind == 'vmem' and p.wide and set(p.wide) & cw:
            n = max(n, 2)
        return n

    def _nops(self, ins):
        out = []
        for c in ins:
            if c.kind in ('label', 'dir'):
                out.append(c)
                continue
            need = 0
            for skip in (False, True):
                dist = 0
                for p in reversed(out):
                    if p.kind in ('label', 'dir'):
                        continue
                    if skip and p.opt is not None and p.opt != c.opt:
                        continue
                    if dist >= 20:
                        break
                    need = max(need, self._need(p, c) - dist)
                    if p.op == 's_nop':
                        dist += int(p.text.split()[1]) + 1
                    else:
                        dist += 1
            if need > 0:
                w = Ins(f's_nop {need - 1}')
                w.opt = c.opt
                out.append(w)
            out.append(c)
        return out

    def text(self):
        ins = self._nops(self._waits())
        return '\n'.join(('' if i.kind == 'label' else '  ') + i.text for i in ins) + '\n'
```

```python
import struct, sys
from asmlib import Prog

NAME = "parallel_sum__spectral_gfnet__glu_gated_reglu__prompt"
S, D, F, NT = 2048, 640, 1536, 21

WS_T, WS_U, WS_H, WS_WD, WS_IT = 0, 0x300000, 0x600000, 0xC00000, 0xE00000
WS_FL = 0xF80000
FL_A, FL_H, FL_B = WS_FL, WS_FL + 1024, WS_FL + 5120
OOB = 0x7FFFFF00
SPIN_MAX = 1 << 20

OPT = dict(pf_code=True, pf_x=True, pf_w=True, pf_f=True)


def f2u(x):
    return struct.unpack('<I', struct.pack('<f', x))[0]


def hx(x):
    return hex(f2u(x))


def vr(i, n=4): return f"v[{i}:{i + n - 1}]"
def ar(i, n=4): return f"a[{i}:{i + n - 1}]"
def sr(i, n=4): return f"s[{i}:{i + n - 1}]"


SX, SG, SU, SD, SWS, SO, SWR, SWI = 28, 32, 36, 40, 44, 48, 52, 56
SDBG = 24
sW = 60

STAMPS = False
ZOOM = ""
WS_ST = 0xF00000
_nst = [0]
STAMP_BASE = 84


def stamp(p, grp=""):
    if STAMPS and grp in (ZOOM, "*"):
        i = _nst[0]
        assert i < 9
        p(f"s_memrealtime s[{STAMP_BASE + 2 * i}:{STAMP_BASE + 1 + 2 * i}]")
        _nst[0] += 1


def stamp_flush(p):
    if STAMPS:
        p.wait_all_vm()
        stamp(p, "*")
        p("s_waitcnt lgkmcnt(0)")
        n = _nst[0]
        p(f"s_lshl_b32 s3, s2, 2\ns_add_u32 s3, s3, s{sW}\ns_lshl_b32 s3, s3, 6\ns_add_u32 s3, s3, {WS_ST}")
        p("v_mov_b32 v1, 0")
        for i in range(n):
            p(f"v_mov_b32 v2, s{STAMP_BASE + 2 * i}")
            p(f"buffer_store_dword v2, v1, {sr(SWS)}, s3 offen offset:{4 * i}")
        _nst[0] = 0


TAB, XS, RING, MISC = 0, 40960, 90112, 155648
EX0, EX1 = RING + 6 * 8192, RING + 7 * 8192
P2C = TAB + 20480
P2X = RING
CSX = MISC
LDSB = 163840
RS = 336


def kernel(p):
    end = "L_end"
    sRB, sCB, sS2, sT0, sT1, sFA, sFB = 61, 62, 63, 64, 65, 66, 67
    sA, sB, sM0X, sM0R, sONE, sHA, sHB = 68, 69, 70, 71, 72, 73, 74
    sT32, sC5, sJOB, sSPIN = 75, 76, 77, 78
    sPR, sNB = 79, 80
    sQ, sT2, sK1 = 81, 82, 83
    vXG = 2
    vXR = 6
    vL16 = 10
    vGA, vGB = 11, 12
    vRA, vRB = 13, 14
    vCA, vCB_ = 15, 16
    vSUM, vSQ = 17, 18
    vFLA = 19
    vNM, vR2 = 20, 22
    vSGN = 24
    vDC, vEXW, vTST = 21, 23, 25
    vHST, vSTA = 26, 27
    vT = 28
    vC1 = 60
    vXT = 76
    vTB = 108
    vACC = 124
    vFR = 188
    vCF = 220
    vCS = 228
    vIND = 232
    vRR = 236
    vFLH, vONE, vPOL = 252, 253, 254
    vPF = 255
    t = lambda i: f"v{vT + i}"

    p.reset()
    p(f"s_cmp_ge_u32 s2, 256\ns_cbranch_scc1 {end}")
    stamp(p, "*")
    p("s_load_dwordx16 s[8:23], s[0:1], 0")
    p("s_load_dwordx4 s[4:7], s[0:1], 64")
    p("v_lshrrev_b32 v1, 6, v0")
    p("v_and_b32 v0, 63, v0")
    p(f"v_readfirstlane_b32 s{sW}, v1")
    p("s_and_b32 s3, s2, 7\ns_lshr_b32 s24, s2, 3")
    p(f"s_and_b32 s25, s3, 1\ns_lshl_b32 s25, s25, 3\ns_and_b32 s26, s24, 7\ns_add_u32 s{sRB}, s25, s26")
    p(f"s_lshr_b32 s25, s3, 1\ns_lshl_b32 s25, s25, 2\ns_lshr_b32 s26, s24, 3\ns_add_u32 s{sCB}, s25, s26")
    p(f"s_lshr_b32 s25, s3, 1\ns_lshl_b32 s25, s25, 3\ns_and_b32 s26, s24, 7\ns_add_u32 s{sPR}, s25, s26")
    p(f"s_and_b32 s25, s3, 1\ns_lshl_b32 s25, s25, 2\ns_lshr_b32 s26, s24, 3\ns_add_u32 s{sNB}, s25, s26")
    p(f"s_lshl_b32 s{sS2}, s{sRB}, 2\ns_add_u32 s{sS2}, s{sS2}, s{sW}")
    p(f"s_mov_b32 s{sT0}, s{sCB}")
    p(f"s_lshr_b32 s25, s{sCB}, 2\ns_add_u32 s25, s25, 16\ns_and_b32 s26, s{sCB}, 3\ns_cmp_eq_u32 s26, 0")
    p(f"s_cselect_b32 s{sT1}, s25, 0\ns_cmp_eq_u32 s{sCB}, 1\ns_cselect_b32 s{sT1}, 20, s{sT1}")
    p(f"s_lshr_b32 s25, s{sCB}, 2\ns_add_u32 s25, s25, 2\ns_sub_u32 s25, s{sCB}, s25")
    p(f"s_lshl_b32 s25, s25, 4\ns_add_u32 s{sJOB}, s25, s{sRB}")
    p(f"s_cmp_lg_u32 s{sT1}, 0\ns_cselect_b32 s{sJOB}, 255, s{sJOB}")
    p(f"s_and_b32 s{sQ}, s{sJOB}, 7\ns_lshr_b32 s{sT2}, s{sJOB}, 3")
    p(f"s_lshl_b32 s{sK1}, s{sQ}, 2\ns_add_u32 s{sK1}, s{sK1}, s{sW}")
    p(f"s_mul_i32 s25, s{sCB}, 96\ns_and_b32 s26, s{sCB}, 1\ns_lshl_b32 s27, s26, 5\ns_add_u32 s{sFA}, s25, s27")
    p(f"s_xor_b32 s26, s26, 1\ns_lshl_b32 s26, s26, 6\ns_add_u32 s{sFB}, s25, s26")
    p(f"s_mov_b32 s{sONE}, 0x3f803f80")
    p(f"s_mul_hi_u32 s{sT32}, s2, {(2**32 + 4) // 5}\ns_mul_i32 s25, s{sT32}, 5\ns_sub_u32 s{sC5}, s2, s25")
    p(f"s_mul_i32 s{sM0X}, s{sW}, 12288\ns_add_u32 s{sM0X}, s{sM0X}, {XS}")
    p(f"s_lshl_b32 s{sM0R}, s{sW}, 11\ns_add_u32 s{sM0R}, s{sM0R}, {RING}")

    p(f"v_lshrrev_b32 {t(0)}, 3, v0\nv_lshlrev_b32 {t(0)}, 6, {t(0)}\nv_add_u32 {t(0)}, s{sS2}, {t(0)}")
    p(f"v_mul_u32_u24 {t(0)}, 1280, {t(0)}")
    p(f"v_and_b32 {t(1)}, 7, v0\nv_lshrrev_b32 {t(2)}, 4, v0\nv_xor_b32 {t(3)}, {t(1)}, {t(2)}\nv_xor_b32 {t(4)}, 4, {t(3)}")
    for i in range(4):
        p(f"v_lshl_add_u32 v{vXG + i}, {t(3 + (i & 1))}, 4, {t(0)}")
        if i:
            p(f"v_add_u32 v{vXG + i}, {i * 655360 - i * 1024}, v{vXG + i}")
    p(f"v_lshlrev_b32 v{vL16}, 4, v0")
    p(f"s_lshl_b32 s3, s2, 2\ns_add_u32 s3, s3, s{sW}")

    def touch(srd, nlines, tmp):
        p(f"s_mul_i32 s5, s3, {nlines * 128}\nv_cmp_gt_u32 vcc, {nlines}, v0\nv_lshl_add_u32 {tmp}, v0, 7, s5")
        p(f"v_cndmask_b32 {tmp}, v{vPOL}, {tmp}, vcc")
        p(f"buffer_load_dword v{vPF}, {tmp}, {sr(srd)}, 0 offen", tag='pf', junk=True)

    p(f"v_mov_b32 v{vPOL}, {OOB}\nv_mov_b32 v{vONE}, 1")
    for srd, src, size in ((SX, 8, S * D * 2), (SWS, 6, 0x10000000), (SG, 16, D * F * 2), (SU, 18, D * F * 2), (SD, 20, D * F * 2),
                           (SO, 22, S * D * 2), (SWR, 10, S * 321 * 2), (SWI, 12, S * 321 * 2), (SDBG, 4, 256)):
        p(f"s_mov_b32 s{srd}, s{src}\ns_mov_b32 s{srd + 1}, s{src + 1}\ns_mov_b32 s{srd + 2}, {size}\ns_mov_b32 s{srd + 3}, 0x20000")
    stamp(p, "pro")

    def x_dma(sl, part=(0, 1, 2, 3), head=True):
        if head:
            p(f"s_add_u32 m0, s{sM0X}, {(sl % 3) * 4096}")
            p(f"s_movk_i32 s{sA}, {sl * 128}")
        for i in part:
            p(f"buffer_load_dwordx4 v{vXG + i}, {sr(SX)}, s{sA} offen offset:{i * 1024} lds", tag=('x', sl))

    if OPT['pf_x']:
        touch(SX, 20, t(6))
    x_dma(0)
    p("s_cmp_lg_u32 s2, 0\ns_cbranch_scc1 L_noclr")
    p.opt_begin()
    for i in range(4):
        p(f"v_mov_b32 {t(8 + i)}, 0")
    p(f"s_lshl_b32 s5, s{sW}, 11\ns_add_u32 s5, s5, {WS_FL}")
    for i in range(2):
        p(f"buffer_store_dwordx4 {vr(vT + 8)}, v{vL16}, {sr(SWS)}, s5 offen offset:{i * 1024} sc1", tag='clr')
    p.opt_end()
    p("L_noclr:")
    if OPT['pf_code']:
        p("s_getpc_b64 s[12:13]\nL_pc:\ns_mov_b32 s14, L_end-L_pc\ns_mov_b32 s15, 0x20000")
        p(f"s_lshr_b32 s5, s2, 3\ns_lshl_b32 s5, s5, 2\ns_add_u32 s5, s5, s{sW}\ns_mul_i32 s5, s5, 384")
        p(f"v_cmp_gt_u32 vcc, 3, v0\nv_lshl_add_u32 {t(6)}, v0, 7, s5\nv_cndmask_b32 {t(6)}, v{vPOL}, {t(6)}, vcc")
        p(f"buffer_load_dword v{vPF}, {t(6)}, s[12:15], 0 offen", tag='pf', junk=True)
    stamp(p, "pro")

    p(f"v_lshrrev_b32 {t(0)}, 2, v0\nv_and_b32 {t(1)}, 7, {t(0)}")
    p(f"s_lshl_b32 s5, s{sW}, 3\nv_add_u32 {t(1)}, s5, {t(1)}\nv_mul_u32_u24 {t(1)}, 3072, {t(1)}")
    p(f"v_and_b32 {t(2)}, 3, v0\nv_lshlrev_b32 {t(2)}, 4, {t(2)}")
    p(f"v_lshrrev_b32 {t(3)}, 5, v0\nv_lshl_add_u32 {t(3)}, {t(3)}, 6, {t(2)}")
    p(f"s_lshl_b32 s5, s{sFA}, 1\nv_add3_u32 v{vGA}, {t(1)}, {t(3)}, s5")
    p(f"s_lshl_b32 s5, s{sW}, 4\nv_add_u32 {t(1)}, s5, {t(0)}\nv_mul_u32_u24 {t(1)}, 3072, {t(1)}")
    p(f"s_lshl_b32 s5, s{sFB}, 1\nv_add3_u32 v{vGB}, {t(1)}, {t(2)}, s5")

    def ring_piece(st, mat):
        if st >= 30:
            return []
        slot = (st % 8) * 8192
        va, off = (vGA, st * 98304) if st < 20 else (vGB, (st - 20) * 196608)
        L = []
        if mat == 0:
            L.append((f"s_mov_b32 s{sB}, {off}", None))
        L.append((f"s_add_u32 m0, s{sM0R}, {slot + 1024 * mat}", None))
        L.append((f"buffer_load_dwordx4 v{va}, {sr(SU if mat else SG)}, s{sB} offen lds", ('w', st)))
        return L

    def emit(L):
        for text, tag in L:
            p(text, tag=tag)

    def ring_dma(st):
        emit(ring_piece(st, 0) + ring_piece(st, 1))

    p(f"v_and_b32 {t(0)}, 31, v0\nv_lshrrev_b32 {t(1)}, 5, v0")
    p(f"v_lshrrev_b32 {t(2)}, 1, {t(0)}\nv_and_b32 {t(2)}, 7, {t(2)}\nv_xor_b32 {t(2)}, {t(2)}, {t(1)}")
    p(f"v_lshlrev_b32 {t(3)}, 7, {t(0)}\nv_add_u32 {t(3)}, s{sM0X}, {t(3)}")
    for tt in range(4):
        p(f"v_xor_b32 {t(4)}, {2 * tt}, {t(2)}")
        p(f"v_lshl_add_u32 v{vXR + tt}, {t(4)}, 4, {t(3)}")
    p(f"v_and_b32 {t(2)}, 15, v0\nv_lshrrev_b32 {t(3)}, 2, {t(2)}\nv_lshlrev_b32 {t(3)}, 6, {t(3)}")
    p(f"v_and_b32 {t(2)}, 3, v0\nv_lshl_add_u32 {t(3)}, {t(2)}, 3, {t(3)}")
    p(f"v_bfe_u32 {t(2)}, v0, 4, 1\nv_lshl_add_u32 {t(3)}, {t(2)}, 5, {t(3)}")
    p(f"v_add_u32 {t(3)}, {RING}, {t(3)}")
    p(f"v_lshl_add_u32 v{vRA}, {t(1)}, 11, {t(3)}")
    p(f"v_lshl_add_u32 v{vRB}, {t(1)}, 9, {t(3)}")
    p(f"s_lshl_b32 s5, s{sW}, 9\nv_add_u32 v{vCA}, s5, v{vRA}")
    p(f"s_and_b32 s5, s{sW}, 1\ns_lshl_b32 s5, s5, 10\ns_lshr_b32 s6, s{sW}, 1\ns_lshl_b32 s6, s6, 11\ns_add_u32 s5, s5, s6")
    p(f"v_add_u32 v{vCB_}, s5, v{vRB}")
    p(f"v_and_b32 {t(2)}, 15, v0\nv_bfe_u32 {t(3)}, v0, 4, 1\nv_cmp_eq_u32 vcc, {t(2)}, {t(3)}")
    p(f"v_mov_b32 {t(4)}, s{sONE}")
    p(f"v_cndmask_b32 v{vIND}, 0, {t(4)}, vcc")
    for i in range(1, 4):
        p(f"v_mov_b32 v{vIND + i}, v{vIND}")
    p(f"v_lshlrev_b32 {t(4)}, 2, {t(1)}\nv_add_u32 {t(4)}, {t(4)}, {t(3)}\nv_lshlrev_b32 {t(4)}, 8, {t(4)}")
    p(f"v_lshl_add_u32 {t(4)}, {t(2)}, 4, {t(4)}\ns_lshl_b32 s5, s{sW}, 2\ns_add_u32 s5, s5, {EX0}\nv_add_u32 v{vEXW}, s5, {t(4)}")
    p(f"v_lshrrev_b32 {t(4)}, 4, v0\ns_lshl_b32 s5, s{sW}, 3\nv_add_u32 {t(4)}, s5, {t(4)}")
    p(f"s_mov_b32 s5, 86016\nv_mul_lo_u32 {t(4)}, {t(4)}, s5\nv_lshl_add_u32 v{vTST}, {t(2)}, 4, {t(4)}")
    p(f"v_lshlrev_b32 {t(4)}, 10, {t(3)}\nv_lshl_add_u32 {t(4)}, {t(1)}, 8, {t(4)}\nv_lshl_add_u32 v{vHST}, {t(2)}, 4, {t(4)}")
    p(f"s_mul_i32 s5, s{sS2}, 48\ns_lshr_b32 s6, s{sFA}, 5\ns_add_u32 s6, s6, s5\ns_lshl_b32 s6, s6, 11\ns_add_u32 s{sHA}, s6, {WS_H}")
    p(f"s_lshr_b32 s6, s{sFB}, 5\ns_add_u32 s6, s6, s5\ns_lshl_b32 s6, s6, 11\ns_add_u32 s{sHB}, s6, {WS_H}")
    p(f"v_and_b32 {t(4)}, 1, v0\nv_lshlrev_b32 {t(4)}, 31, {t(4)}\nv_or_b32 v{vSGN}, 0x3f800000, {t(4)}")
    p(f"v_cmp_eq_u32 vcc, 0, {t(0)}\nv_mov_b32 {t(4)}, {hx(-640.0)}\nv_cndmask_b32 v{vDC}, 0, {t(4)}, vcc")
    p(f"v_lshlrev_b32 {t(4)}, 4, {t(1)}\ns_add_u32 s5, s{sM0X}, 12032\nv_add_u32 v{vSTA}, s5, {t(4)}")
    p(f"v_mov_b32 v{vSUM}, 0\nv_mov_b32 v{vSQ}, 0")
    p(f"s_lshl_b32 s5, s{sCB}, 4\ns_add_u32 s5, s5, s{sRB}\ns_lshl_b32 s5, s5, 2\ns_add_u32 s5, s5, {FL_A}")
    p(f"s_cmp_eq_u32 s{sW}, 0\ns_cselect_b32 s5, s5, {OOB}")
    p(f"s_lshl_b32 s6, s{sS2}, 4\ns_add_u32 s6, s6, s{sCB}\ns_lshl_b32 s6, s6, 2\ns_add_u32 s6, s6, {FL_H}")
    p(f"v_mov_b32 {t(4)}, s5\nv_mov_b32 {t(6)}, s6\nv_cmp_eq_u32 vcc, 0, v0")
    p(f"v_cndmask_b32 v{vFLA}, v{vPOL}, {t(4)}, vcc\nv_cndmask_b32 v{vFLH}, v{vPOL}, {t(6)}, vcc")
    stamp(p, "pro")

    def gen_table(sT, base):
        p(f"v_and_b32 {t(0)}, 15, v0\ns_lshl_b32 s5, s{sT}, 4\nv_add_u32 {t(0)}, s5, {t(0)}")
        p(f"v_cmp_ge_u32 vcc, 320, {t(0)}\nv_cndmask_b32 {t(6)}, 0, -1, vcc")
        p(f"v_cvt_f32_u32 {t(1)}, {t(0)}\nv_mul_f32 {t(1)}, {hx(1.0 / 640)}, {t(1)}")
        p(f"v_lshrrev_b32 {t(2)}, 5, v0\nv_lshlrev_b32 {t(2)}, 3, {t(2)}\ns_mul_i32 s5, s{sW}, 80\nv_add_u32 {t(2)}, s5, {t(2)}")
        p(f"v_mul_u32_u24 {t(2)}, {t(2)}, {t(0)}\nv_cvt_f32_u32 {t(2)}, {t(2)}\nv_mul_f32 {t(2)}, {hx(1.0 / 640)}, {t(2)}")
        p(f"v_fract_f32 {t(2)}, {t(2)}")
        p(f"v_bfe_u32 {t(3)}, v0, 4, 1\nv_cvt_f32_u32 {t(3)}, {t(3)}\nv_fmac_f32 {t(2)}, {hx(0.25)}, {t(3)}")
        p(f"v_mul_f32 {t(4)}, {hx(16.0)}, {t(1)}\nv_fract_f32 {t(4)}, {t(4)}")
        p(f"s_mul_i32 s5, s{sW}, 5120\nv_add_u32 {t(7)}, s5, v{vL16}")
        for tt in range(5):
            a = vXT + 16 * (tt & 1)
            p(f"v_cos_f32 v{a}, {t(2)}")
            p(f"v_add_f32 v{a + 1}, {t(2)}, {t(1)}")
            for j in range(1, 8):
                if j < 7:
                    p(f"v_add_f32 v{a + j + 1}, v{a + j}, {t(1)}")
                p(f"v_cos_f32 v{a + j}, v{a + j}")
            p(f"v_add_f32 {t(2)}, {t(2)}, {t(4)}")
            for j in range(4):
                p(f"v_cvt_pk_bf16_f32 v{a + 8 + j}, v{a + 2 * j}, v{a + 2 * j + 1}")
            for j in range(4):
                p(f"v_and_b32 v{a + 8 + j}, {t(6)}, v{a + 8 + j}")
            p(f"ds_write_b128 {t(7)}, {vr(a + 8)} offset:{base + tt * 1024}")

    gen_table(sT0, TAB)
    stamp(p, "pro")
    x_dma(1)
    p(f"s_cmp_eq_u32 s{sT1}, 0\ns_cbranch_scc1 L_notab1")
    p.opt_begin()
    gen_table(sT1, TAB + 20480)
    p("s_branch L_tabs")
    p.opt_end()
    p("L_notab1:")
    p.opt_begin()
    p(f"v_and_b32 {t(2)}, 15, v0\nv_cvt_f32_u32 {t(3)}, {t(2)}\nv_mul_f32 {t(3)}, {hx(1.0 / 64)}, {t(3)}")
    p(f"v_lshrrev_b32 {t(0)}, 4, v0\nv_lshlrev_b32 {t(4)}, 2, {t(0)}\ns_lshl_b32 s5, s{sW}, 4\nv_add_u32 {t(4)}, s5, {t(4)}\nv_cvt_f32_u32 {t(4)}, {t(4)}")
    for r in range(4):
        p(f"v_add_f32 {t(8)}, {hx(float(r))}, {t(4)}\nv_mul_f32 {t(8)}, {t(8)}, {t(3)}\nv_fract_f32 {t(8)}, {t(8)}")
        p(f"v_cos_f32 {t(6)}, {t(8)}\nv_sin_f32 {t(7)}, {t(8)}")
        for mt in range(4):
            c, s_ = t(6), t(7)
            lo, hi = [(c, s_), ('-' + s_, c), ('-' + c, '-' + s_), (s_, '-' + c)][(mt * r) % 4]
            p(f"v_cvt_pk_bf16_f32 v{vXT + 4 * mt + r}, {lo}, {hi}")
    p(f"s_lshl_b32 s5, s{sW}, 10\nv_add_u32 {t(7)}, s5, v{vL16}")
    for mt in range(4):
        p(f"ds_write_b128 {t(7)}, {vr(vXT + 4 * mt)} offset:{P2C + mt * 4096}")
    p.opt_end()
    p("L_tabs:")
    stamp(p, "pro")

    p(f"v_and_b32 {t(0)}, 31, v0\nv_cvt_f32_u32 {t(1)}, {t(0)}\nv_mul_f32 {t(1)}, {hx(1.0 / 2048)}, {t(1)}")
    p(f"v_lshrrev_b32 {t(2)}, 5, v0\nv_lshlrev_b32 {t(2)}, 8, {t(2)}\nv_add_u32 {t(2)}, s{sS2}, {t(2)}\nv_cvt_f32_u32 {t(2)}, {t(2)}")
    p(f"v_and_b32 {t(3)}, 1, v0\nv_mul_u32_u24 {t(3)}, 0x8000, {t(3)}\nv_lshl_or_b32 {t(3)}, {t(3)}, 16, {t(3)}")
    for j in range(8):
        s1 = 8 * (j >> 2) + (j & 3)
        p(f"v_add_f32 {t(4)}, {hx(64.0 * s1)}, {t(2)}\nv_mul_f32 {t(4)}, {t(4)}, {t(1)}\nv_fract_f32 {t(4)}, {t(4)}")
        p(f"v_cos_f32 {t(8 + j)}, {t(4)}\nv_sin_f32 {t(16 + j)}, {t(4)}")
    for j in range(4):
        p(f"v_cvt_pk_bf16_f32 v{vC1 + j}, {t(8 + 2 * j)}, {t(9 + 2 * j)}")
        p(f"v_cvt_pk_bf16_f32 v{vC1 + 8 + j}, {t(16 + 2 * j)}, {t(17 + 2 * j)}")
    for j in range(4):
        p(f"v_xor_b32 v{vC1 + 4 + j}, {t(3)}, v{vC1 + j}")
        p(f"v_xor_b32 v{vC1 + 12 + j}, {t(3)}, v{vC1 + 8 + j}")
    stamp(p, "pro")

    vIT = vACC + 48
    p(f"s_mul_hi_u32 s5, s3, {(2**32 + 39) // 40}\ns_mul_i32 s6, s5, 40\ns_sub_u32 s6, s3, s6")
    p(f"v_and_b32 {t(0)}, 15, v0\ns_lshl_b32 s6, s6, 4\nv_add_u32 {t(0)}, s6, {t(0)}")
    p(f"v_lshrrev_b32 {t(1)}, 4, v0\nv_lshlrev_b32 {t(1)}, 2, {t(1)}\ns_lshl_b32 s5, s5, 4\nv_add_u32 {t(1)}, s5, {t(1)}")
    a1 = 1.0 / (S * D)
    p(f"v_mov_b32 {t(2)}, {hx(2 * a1)}\nv_mov_b32 {t(3)}, {hx(a1)}")
    for r in range(4):
        p(f"v_add_u32 {t(4)}, {r}, {t(1)}")
        p(f"v_mul_u32_u24 {t(9)}, {t(4)}, {t(0)}\nv_cvt_f32_u32 {t(9)}, {t(9)}\nv_mul_f32 {t(9)}, {hx(1.0 / 640)}, {t(9)}")
        p(f"v_cmp_eq_u32 vcc, 0, {t(4)}\nv_fract_f32 {t(9)}, {t(9)}\nv_cos_f32 {t(6)}, {t(9)}\nv_cndmask_b32 {t(8)}, {t(2)}, {t(3)}, vcc")
        p(f"v_cmp_eq_u32 vcc, 320, {t(4)}\nv_sin_f32 {t(7)}, {t(9)}\ns_nop 0\nv_cndmask_b32 {t(8)}, {t(8)}, {t(3)}, vcc")
        p(f"v_cmp_ge_u32 vcc, 320, {t(4)}\nv_cndmask_b32 {t(8)}, 0, {t(8)}, vcc")
        p(f"v_mul_f32 {t(6)}, {t(6)}, {t(8)}\nv_mul_f32 {t(7)}, {t(7)}, {t(8)}")
        p(f"v_cvt_pk_bf16_f32 v{vIT + r}, {t(6)}, -{t(7)}")
    x_dma(2)
    stamp(p, "pro")
    stamp(p)
    p("s_cmp_lg_u32 s2, 0\ns_cbranch_scc1 L_noclr2")
    p.opt_begin()
    p.wait_tag('clr')
    p.opt_end()
    p("L_noclr2:")
    p.wait_lds()
    p("s_barrier")
    p(f"s_cmp_lg_u32 s3, 0\ns_cbranch_scc1 L_nogo")
    p.opt_begin()
    p(f"v_mov_b32 {t(0)}, 0\nbuffer_store_dword v{vONE}, {t(0)}, {sr(SDBG)}, 0 offen sc1")
    p.opt_end()
    p("L_nogo:")

    npoll = [0]

    def poll_issue(dst, vaddr, srd, soff, x4=False):
        op, d = ("buffer_load_dwordx4", vr(dst)) if x4 else ("buffer_load_dword", f"v{dst}")
        p(f"{op} {d}, {vaddr}, {sr(srd)}, {soff} offen sc1")

    def poll_check(dst, vaddr, srd, soff, thr, x4=False):
        n = npoll[0]
        npoll[0] += 1
        inner = p._opt is not None

        def test():
            if x4:
                p(f"v_min3_u32 v{dst}, v{dst}, v{dst + 1}, v{dst + 2}\nv_min_u32 v{dst}, v{dst}, v{dst + 3}")
            p(f"v_cmp_le_u32 vcc, {thr}, v{dst}\ns_nop 0\ns_cmp_eq_u64 vcc, exec")

        test()
        p(f"s_cbranch_scc1 L_ok{n}")
        if not inner:
            p.opt_begin()
        saved = len(p.ins)
        p(f"s_mov_b32 s{sSPIN}, {SPIN_MAX}")
        p(f"L_spin{n}:")
        p("s_sleep 2")
        poll_issue(dst, vaddr, srd, soff, x4)
        p("s_waitcnt vmcnt(0)")
        test()
        p(f"s_cbranch_scc1 L_ok{n}")
        p(f"s_sub_u32 s{sSPIN}, s{sSPIN}, 1\ns_cmp_lg_u32 s{sSPIN}, 0\ns_cbranch_scc1 L_spin{n}")
        if inner:
            p._nopt += 1
            for i in p.ins[saved:]:
                i.opt = p._nopt
        else:
            p.opt_end()
        p(f"L_ok{n}:")

    A1, A2 = vACC, vACC + 16

    def x_reads_v(sl):
        for tt in range(4):
            p(f"ds_read_b128 {vr(vXT + 16 * (sl & 1) + 4 * tt)}, v{vXR + tt} offset:{(sl % 3) * 4096}")

    def x_reads_a(sl):
        for tt in range(4):
            p(f"ds_read_b128 {ar(16 * sl + 4 * tt)}, v{vXR + tt} offset:{(sl % 3) * 4096}")

    def tab_read(k, base):
        p(f"ds_read_b128 {vr(vTB + 4 * (k % 4))}, v{vL16} offset:{base + (k % 20) * 1024}")

    def wd_dma():
        p(f"v_lshrrev_b32 {t(0)}, 4, v0\ns_lshl_b32 s5, s{sW}, 3\ns_lshl_b32 s6, s{sT32}, 5\ns_add_u32 s5, s5, s6")
        p(f"v_add_u32 {t(0)}, s5, {t(0)}\nv_mul_u32_u24 {t(0)}, 1280, {t(0)}")
        p(f"v_and_b32 {t(1)}, 15, v0\nv_lshl_add_u32 {t(0)}, {t(1)}, 4, {t(0)}")
        p(f"s_lshl_b32 s5, s{sC5}, 8\ns_add_u32 s6, s5, {4 * 1280}\ns_lshl_b32 s7, s{sW}, 11")
        p(f"s_add_u32 m0, s7, {MISC}")
        p(f"buffer_load_dwordx4 {t(0)}, {sr(SD)}, s5 offen lds", tag='wd')
        p(f"s_add_u32 m0, s7, {MISC + 1024}")
        p(f"buffer_load_dwordx4 {t(0)}, {sr(SD)}, s6 offen lds", tag='wd')

    p.wait_tag(('x', 0))
    x_reads_v(0)
    x_reads_a(0)
    for tt in range(4):
        tab_read(tt, TAB)
    for sl in range(10):
        xb = vXT + 16 * (sl & 1)
        for j in range(16):
            p(f"v_dot2c_f32_bf16 v{vSUM}, s{sONE}, v{xb + j}")
            p(f"v_dot2c_f32_bf16 v{vSQ}, v{xb + j}, v{xb + j}")
        p.wait_lds()

        def mf(tt):
            k = 4 * sl + tt
            acc = A1 if k < 20 else A2
            c = "0" if k in (0, 20) else vr(acc, 16)
            p(f"v_mfma_f32_32x32x16_bf16 {vr(acc, 16)}, {vr(xb + 4 * tt)}, {vr(vTB + 4 * tt)}, {c}")

        mf(0)
        if sl + 3 < 10:
            x_dma(sl + 3, (0, 1))
        mf(1)
        if sl + 3 < 10:
            x_dma(sl + 3, (2, 3), head=False)
        if sl + 1 < 10:
            p.wait_tag(('x', sl + 1))
        mf(2)
        if sl + 1 < 10:
            x_reads_v(sl + 1)
        mf(3)
        if sl + 1 < 10:
            x_reads_a(sl + 1)
            for tt in range(4):
                tab_read(4 * sl + 4 + tt, TAB)
        if sl == 6:
            wd_dma()
            if OPT['pf_w']:
                touch(SG, 15, t(6))
                touch(SU, 15, t(7))
        if sl == 7:
            ring_dma(0)
            ring_dma(1)
        if sl == 8:
            ring_dma(2)
            p(f"v_mov_b32 {t(30)}, 0")
            poll_issue(vT + 31, t(30), SDBG, 0)
        if sl == 9:
            ring_dma(3)
    stamp(p)

    p(f"v_mov_b32 {t(0)}, v{vSUM}\nv_mov_b32 {t(1)}, v{vSQ}")
    p(f"v_permlane32_swap_b32 {t(0)}, v{vSUM}\nv_permlane32_swap_b32 {t(1)}, v{vSQ}")
    p(f"v_add_f32 {t(0)}, {t(0)}, v{vSUM}\nv_add_f32 {t(1)}, {t(1)}, v{vSQ}")
    p(f"v_mul_f32 {t(0)}, {hx(1.0 / 640)}, {t(0)}\nv_mul_f32 {t(1)}, {hx(1.0 / 640)}, {t(1)}")
    p(f"v_fma_f32 {t(1)}, -{t(0)}, {t(0)}, {t(1)}\nv_max_f32 {t(1)}, 0, {t(1)}")
    p(f"v_cvt_pk_bf16_f32 {t(2)}, {t(0)}, {t(1)}")
    p(f"v_lshlrev_b32 {t(0)}, 16, {t(2)}\nv_and_b32 {t(1)}, 0xffff0000, {t(2)}")
    p(f"v_add_f32 {t(1)}, {hx(1e-5)}, {t(1)}\nv_cvt_pk_bf16_f32 {t(1)}, {t(1)}, {t(1)}\nv_and_b32 {t(1)}, 0xffff0000, {t(1)}")
    p(f"v_sqrt_f32 {t(1)}, {t(1)}\nv_and_b32 {t(2)}, 31, v0\nv_cvt_pk_bf16_f32 {t(1)}, {t(1)}, {t(1)}\nv_and_b32 {t(1)}, 0xffff0000, {t(1)}")
    p(f"v_rcp_f32 {t(1)}, {t(1)}")
    p(f"v_lshlrev_b32 {t(2)}, 2, {t(2)}\ns_add_u32 s5, s{sM0X}, 12032\nv_add_u32 {t(2)}, s5, {t(2)}")
    p(f"ds_write2_b32 {t(2)}, {t(1)}, {t(0)} offset0:0 offset1:32")
    p(f"v_sub_f32 v{vNM}, 0, {t(0)}\nv_mul_f32 v{vR2}, {t(1)}, {t(1)}")
    p.wait_lds()
    for a in range(4):
        p(f"ds_read_b128 {vr(vRR + 4 * a)}, v{vSTA} offset:{32 * a}")
    p(f"s_lshl_b32 s5, s3, 10\ns_add_u32 s5, s5, {WS_IT}\ns_cmp_lt_u32 s3, 840\ns_cselect_b32 s5, s5, {OOB}")
    p(f"buffer_store_dwordx4 {vr(vIT)}, v{vL16}, {sr(SWS)}, s5 offen sc1", tag='p0')

    def dft_front(sT, ex, first):
        for i in range(0, 16, 2):
            p(f"v_pk_fma_f32 {vr(A1 + i, 2)}, {vr(A2 + i, 2)}, {vr(vSGN, 2)}, {vr(A1 + i, 2)} op_sel_hi:[1,0,1]")
        if first:
            ring_dma(4)
            p(f"s_cmp_lg_u32 s{sT}, 0\ns_cbranch_scc1 L_nodc")
            p.opt_begin()
            for a in range(4):
                p(f"ds_read_b128 {vr(vT + 4 * a)}, v{vSTA} offset:{128 + 32 * a}")
            for i in range(16):
                p(f"v_fmac_f32 v{A1 + i}, v{vDC}, {t(i)}")
            p.opt_end()
            p("L_nodc:")
        for i in range(0, 16, 2):
            p(f"v_pk_mul_f32 {vr(A1 + i, 2)}, {vr(A1 + i, 2)}, {vr(vRR + i, 2)}")
        for j in range(8):
            p(f"v_cvt_pk_bf16_f32 {t(j)}, v{A1 + 2 * j}, v{A1 + 2 * j + 1}")
        P_, Q_ = vACC + 32, vACC + 48
        p(f"v_mfma_f32_32x32x16_bf16 {vr(P_, 16)}, {vr(vC1)}, {vr(vT)}, 0")
        p(f"v_mfma_f32_32x32x16_bf16 {vr(P_, 16)}, {vr(vC1 + 4)}, {vr(vT + 4)}, {vr(P_, 16)}")
        p(f"v_mfma_f32_32x32x16_bf16 {vr(Q_, 16)}, {vr(vC1 + 8)}, {vr(vT)}, 0")
        p(f"v_mfma_f32_32x32x16_bf16 {vr(Q_, 16)}, {vr(vC1 + 12)}, {vr(vT + 4)}, {vr(Q_, 16)}")
        if first:
            ring_dma(5)
        for q in range(8):
            p(f"v_permlane16_swap_b32 v{P_ + 2 * q}, v{P_ + 2 * q + 1}")
        for q in range(8):
            p(f"v_permlane16_swap_b32 v{Q_ + 2 * q}, v{Q_ + 2 * q + 1}")
        for q in range(8):
            p(f"v_add_f32 v{P_ + 2 * q}, v{P_ + 2 * q}, v{Q_ + 2 * q + 1}")
            p(f"v_sub_f32 v{P_ + 2 * q + 1}, v{P_ + 2 * q + 1}, v{Q_ + 2 * q}")
            p(f"v_cvt_pk_bf16_f32 {t(8 + q)}, v{P_ + 2 * q}, v{P_ + 2 * q + 1}")
            p(f"ds_write_b32 v{vEXW}, {t(8 + q)} offset:{ex - EX0 + (8 * (q >> 1) + 2 * (q & 1)) * 256}")

    def dft_back(sT, ex):
        p(f"s_lshl_b32 s5, s{sW}, 11\ns_add_u32 s5, s5, {ex}\nv_add_u32 {t(16)}, s5, v{vL16}")
        for e in range(2):
            p(f"ds_read_b128 {vr(vT + 20 + 4 * e)}, {t(16)} offset:{e * 1024}")
        p(f"s_lshl_b32 s5, s{sT}, 4\ns_add_u32 s5, s5, s{sRB}\ns_lshl_b32 s5, s5, 8\ns_add_u32 s5, s5, {WS_T}")
        p(f"s_add_u32 s6, s5, {4 * 86016}")
        p(f"buffer_store_dwordx4 {vr(vT + 20)}, v{vTST}, {sr(SWS)}, s5 offen sc1", tag='p0')
        p(f"buffer_store_dwordx4 {vr(vT + 24)}, v{vTST}, {sr(SWS)}, s6 offen sc1", tag='p0')

    dft_front(sT0, EX0, True)
    poll_check(vT + 31, t(30), SDBG, 0, 1)
    p.wait_tag('wd')
    p.wait_lds()
    p("s_barrier")
    dft_back(sT0, EX0)
    p(f"v_lshrrev_b32 {t(0)}, 5, v0\nv_lshlrev_b32 {t(0)}, 4, {t(0)}\nv_bfe_u32 {t(1)}, v0, 4, 1\nv_lshl_add_u32 {t(0)}, {t(1)}, 2, {t(0)}")
    p(f"v_bfe_u32 {t(1)}, v0, 2, 2\nv_add_u32 {t(0)}, {t(0)}, {t(1)}\nv_lshlrev_b32 {t(0)}, 8, {t(0)}")
    p(f"v_and_b32 {t(1)}, 3, v0\nv_lshl_add_u32 {t(0)}, {t(1)}, 3, {t(0)}\ns_lshl_b32 s5, s{sW}, 6\ns_add_u32 s5, s5, {MISC}\nv_add_u32 {t(0)}, s5, {t(0)}")
    for jt in range(2):
        for q in range(2):
            p(f"ds_read_b64_tr_b16 {vr(vT + 4 + 4 * jt + 2 * q, 2)}, {t(0)} offset:{jt * 32 + q * 2048}")
    p(f"s_mul_i32 s5, s{sT32}, 40\ns_lshl_b32 s6, s{sC5}, 3\ns_add_u32 s5, s5, s6\ns_lshl_b32 s6, s{sW}, 1\ns_add_u32 s5, s5, s6")
    p(f"s_lshl_b32 s5, s5, 10\ns_add_u32 s5, s5, {WS_WD}\ns_cmp_lt_u32 s2, 240\ns_cselect_b32 s5, s5, {OOB}")
    for jt in range(2):
        p(f"buffer_store_dwordx4 {vr(vT + 4 + 4 * jt)}, v{vL16}, {sr(SWS)}, s5 offen offset:{jt * 1024} sc1", tag='p0')
    stamp(p, "p1")

    p(f"s_cmp_eq_u32 s{sT1}, 0\ns_cbranch_scc1 L_nou1")
    p.opt_begin()
    for k in range(3):
        tab_read(k, TAB + 20480)
    for k in range(40):
        acc = A1 if k < 20 else A2
        c = "0" if k in (0, 20) else vr(acc, 16)
        p(f"v_mfma_f32_32x32x16_bf16 {vr(acc, 16)}, {ar(4 * k)}, {vr(vTB + 4 * (k % 4))}, {c}")
        if k + 3 < 40:
            tab_read(k + 3, TAB + 20480)
    dft_front(sT1, EX1, False)
    p.wait_lds()
    p("s_barrier")
    dft_back(sT1, EX1)
    p.opt_end()
    p("L_nou1:")
    stamp(p)

    def readsA(k, tile):
        st, tt = k >> 1, k & 1
        fr = vFR + 16 * (k & 1) + 4 * tile
        for q in range(2):
            p(f"ds_read_b64_tr_b16 {vr(fr + 2 * q, 2)}, v{vRA} offset:{(st % 8) * 8192 + tt * 4096 + tile * 512 + q * 256}")

    def readsCA(k):
        st, tt = k >> 1, k & 1
        for q in range(2):
            p(f"ds_read_b64_tr_b16 {vr(vCF + 4 * (k & 1) + 2 * q, 2)}, v{vCA} offset:{(st % 8) * 8192 + tt * 4096 + q * 256}")

    p.wait_tag(('w', 0))
    p.wait_lds()
    p("s_barrier")
    for tile in range(4):
        readsA(0, tile)
    readsCA(0)
    ring_dma(6)
    for k in range(40):
        nxt = k + 1 < 40
        j = (k + 1) >> 1

        def mfA(tile):
            acc = vACC + 16 * tile
            c = "0" if k == 0 else vr(acc, 16)
            p(f"v_mfma_f32_32x32x16_bf16 {vr(acc, 16)}, {vr(vFR + 16 * (k & 1) + 4 * tile)}, {ar(4 * k)}, {c}")

        mfA(0)
        if k & 1 and nxt:
            if j == 4:
                p.wait_tag(('w', j), 'p0')
            else:
                p.wait_tag(('w', j))
            p("s_barrier")
        if nxt:
            readsA(k + 1, 0)
        mfA(1)
        piece = (ring_piece(j + 6, 0)[1:] if nxt else []) if k & 1 else (ring_piece(j + 6, 1) if k > 0 else [])
        emit(piece[:-1])
        if nxt:
            readsA(k + 1, 1)
        emit(piece[-1:])
        mfA(2)
        if nxt:
            readsA(k + 1, 2)
            readsCA(k + 1)
        mfA(3)
        if nxt:
            readsA(k + 1, 3)
        if not k & 1 and k < 38:
            emit(ring_piece(j + 7, 0)[:1])
        if k == 7:
            p(f"buffer_store_dword v{vONE}, v{vFLA}, {sr(SWS)}, 0 offen sc1")
        if k == 12 and OPT['pf_f']:
            touch(SWR, 11, t(6))
        if k == 14 and OPT['pf_f']:
            touch(SWI, 11, t(7))
        c = "0" if k == 0 else vr(vCS)
        p(f"v_mfma_f32_16x16x32_bf16 {vr(vCS)}, {vr(vCF + 4 * (k & 1))}, {vr(vIND)}, {c}")
    stamp(p)

    vCSW, vCSR = vXG, vXG + 1
    p(f"v_and_b32 {t(0)}, 15, v0\nv_lshrrev_b32 {t(1)}, 4, v0\nv_lshlrev_b32 {t(1)}, 4, {t(1)}\nv_lshl_add_u32 {t(1)}, {t(0)}, 6, {t(1)}")
    p(f"s_lshl_b32 s5, s{sW}, 7\nv_add_u32 {t(1)}, s5, {t(1)}\nv_add_u32 {t(2)}, 2048, v{vL16}")
    p(f"v_cmp_gt_u32 vcc, 2, {t(0)}\nv_lshrrev_b32 {t(3)}, 5, v0\nv_lshlrev_b32 {t(3)}, 4, {t(3)}\nv_cndmask_b32 {t(1)}, {t(2)}, {t(1)}, vcc")
    p(f"v_add_u32 v{vCSW}, {CSX}, {t(1)}\nv_add_u32 v{vCSR}, {CSX}, {t(3)}")

    def glu_epilogue(G, U, csg, csu, soff, tag, two=False):
        n = 0
        for acc, cs in ((G, csg), (U, csu)):
            for part in range(2 if two else 1):
                b = vXT + 16 * (n & 1) if not two else vFR + 16 * (n & 1)
                n += 1
                for a in range(4):
                    p(f"ds_read_b128 {vr(b + 4 * a)}, v{vCSR} offset:{cs + part * 256 + 32 * a}")
                for i in range(0, 16, 2):
                    p(f"v_pk_fma_f32 {vr(acc + i, 2)}, {vr(b + i, 2)}, {vr(vNM, 2)}, {vr(acc + i, 2)} op_sel_hi:[1,0,1]")
        for i in range(0, 16, 2):
            p(f"v_max_f32 v{G + i}, 0, v{G + i}\nv_max_f32 v{G + i + 1}, 0, v{G + i + 1}")
            p(f"v_pk_mul_f32 {vr(U + i, 2)}, {vr(U + i, 2)}, {vr(vR2, 2)} op_sel_hi:[1,0]")
        for i in range(0, 16, 2):
            p(f"v_pk_mul_f32 {vr(G + i, 2)}, {vr(G + i, 2)}, {vr(U + i, 2)}")
        for j in range(8):
            p(f"v_cvt_pk_bf16_f32 v{U + j}, v{G + 2 * j}, v{G + 2 * j + 1}")
        for u in range(2):
            p(f"buffer_store_dwordx4 {vr(U + 4 * u)}, v{vHST}, {sr(SWS)}, {soff} offen offset:{u * 512} sc1", tag=tag)

    def readsB(k, mat):
        st, tt = 20 + (k >> 2), k & 3
        fr = vFR + 8 * (k & 1) + 4 * mat
        for q in range(2):
            p(f"ds_read_b64_tr_b16 {vr(fr + 2 * q, 2)}, v{vRB} offset:{(st % 8) * 8192 + tt * 2048 + mat * 1024 + q * 256}")

    def readsCB(k2):
        st, tt = 20 + (k2 >> 1), (k2 & 1) * 2
        for q in range(2):
            p(f"ds_read_b64_tr_b16 {vr(vCF + 4 * (k2 & 1) + 2 * q, 2)}, v{vCB_} offset:{(st % 8) * 8192 + tt * 2048 + q * 256}")

    p(f"ds_write_b128 v{vCSW}, {vr(vCS)}")
    p.wait_tag(('w', 20))
    p.wait_lds()
    p("s_barrier")
    readsB(0, 0)
    readsB(0, 1)
    readsCB(0)
    ring_dma(26)
    emit(ring_piece(27, 0))
    glu_epilogue(vACC, vACC + 32, 0, 256, f"s{sHA}", 'hA')
    emit(ring_piece(27, 1))
    p(f"s_add_u32 s{sHA}, s{sHA}, 2048")
    glu_epilogue(vACC + 16, vACC + 48, 128, 384, f"s{sHA}", 'hA')
    stamp(p, "p1")

    vPA, vPH = vXG + 2, vXG + 3
    BG, BU = vACC, vACC + 16
    for k in range(40):
        nxt = k + 1 < 40
        j = 20 + ((k + 1) >> 2)

        def mfB(mat):
            acc = vACC + 16 * mat
            c = "0" if k == 0 else vr(acc, 16)
            p(f"v_mfma_f32_32x32x16_bf16 {vr(acc, 16)}, {vr(vFR + 8 * (k & 1) + 4 * mat)}, {ar(4 * k)}, {c}")

        mfB(0)
        if (k & 3) == 3 and nxt:
            p.wait_tag(('w', j))
            p("s_barrier")
        piece = ring_piece(26 + (k >> 2), k & 1) if (k & 3) in (0, 1) and k >= 8 else []
        emit(piece[:-1])
        if nxt:
            readsB(k + 1, 0)
        emit(piece[-1:])
        mfB(1)
        if nxt:
            readsB(k + 1, 1)
        if k == 10:
            p.wait_tag('hA')
            p(f"buffer_store_dword v{vONE}, v{vFLH}, {sr(SWS)}, 0 offen sc1")
        if k & 1:
            k2 = k >> 1
            c = "0" if k2 == 0 else vr(vCS)
            p(f"v_mfma_f32_16x16x32_bf16 {vr(vCS)}, {vr(vCF + 4 * (k2 & 1))}, {vr(vIND)}, {c}")
            if k2 + 1 < 20:
                readsCB(k2 + 1)
    stamp(p)
    vFA4 = vACC + 32
    vFH1 = vACC + 36
    p(f"v_and_b32 {t(0)}, 3, v0\nv_bfe_u32 {t(1)}, v0, 2, 1\nv_lshl_add_u32 {t(0)}, {t(1)}, 4, {t(0)}")
    p(f"s_lshl_b32 s5, s{sPR}, 5\ns_lshl_b32 s6, s{sW}, 2\ns_add_u32 s5, s5, s6\nv_add_u32 {t(0)}, s5, {t(0)}\nv_lshlrev_b32 {t(0)}, 2, {t(0)}")
    p(f"v_add_u32 v{vPH}, {FL_H}, {t(0)}\nv_add_u32 v{vPA}, {FL_A}, v{vL16}")
    poll_issue(vFA4, f"v{vPA}", SWS, 0, x4=True)
    poll_issue(vFH1, f"v{vPH}", SWS, 0)
    p(f"ds_write_b128 v{vCSW}, {vr(vCS)} offset:512")

    vIN, vIN2, vWR, vWI, vX, vY = 60, 108, 76, 92, 124, 156
    vWA = vXR
    p(f"s_cmp_ge_u32 s{sJOB}, 168\ns_cbranch_scc1 L_now")
    p.opt_begin()
    p(f"v_lshrrev_b32 {t(0)}, 4, v0\nv_lshlrev_b32 {t(1)}, 7, {t(0)}\nv_add_u32 {t(1)}, s{sK1}, {t(1)}\nv_mul_u32_u24 {t(1)}, 642, {t(1)}")
    p(f"v_and_b32 {t(2)}, 15, v0\ns_lshl_b32 s5, s{sT2}, 4\nv_add_u32 {t(3)}, s5, {t(2)}\nv_lshl_add_u32 v{vWA}, {t(3)}, 1, {t(1)}")
    for k in range(4):
        for r in range(4):
            p(f"s_mov_b32 s5, {k * 328704 + r * 20544}")
            p(f"buffer_load_ushort v{vWR + 4 * k + r}, v{vWA}, {sr(SWR)}, s5 offen")
            p(f"buffer_load_ushort v{vWI + 4 * k + r}, v{vWA}, {sr(SWI)}, s5 offen")
    p.opt_end()
    p("L_now:")
    p.wait_lds()
    p("s_barrier")
    glu_epilogue(BG, BU, 512, 512 + 128, f"s{sHB}", 'hB', two=True)
    stamp(p, "p3")

    sH0, sH1, sWD, sU0, sU1, sIT = 61, 62, 63, 64, 65, 66
    sa, sb0, sb1, sa4 = 67, 68, 69, 70
    p(f"s_mul_i32 s5, s{sW}, 12\ns_mul_i32 s6, s{sPR}, 96\ns_add_u32 s6, s6, s5\ns_lshl_b32 s6, s6, 11\ns_add_u32 s{sH0}, s6, {WS_H}")
    p(f"s_mul_i32 s5, s5, 40\ns_mul_i32 s7, s{sNB}, 5\ns_add_u32 s5, s5, s7\ns_lshl_b32 s5, s5, 10\ns_add_u32 s{sWD}, s5, {WS_WD}")
    p(f"s_mul_i32 s5, s{sW}, 5\ns_add_u32 s5, s5, 1\ns_mul_i32 s6, s{sPR}, 42\ns_add_u32 s6, s6, s5\ns_lshl_b32 s6, s6, 11\ns_add_u32 s{sU0}, s6, {WS_U}")
    p(f"s_mul_i32 s5, s5, 40\ns_add_u32 s5, s5, s7\ns_lshl_b32 s5, s5, 10\ns_add_u32 s{sIT}, s5, {WS_IT}")

    stage = [('a', 80), ('a', 116), ('v', 188), ('a', 160), ('a', 196)]
    ORDER = [0, 1, 4, 5, 6, 7, 10, 11, 2, 3, 8, 9]
    NG, NU = 12, 18

    def st_of(u):
        return stage[u % 5]

    def fr(u, j):
        k, b = st_of(u)
        return f"{k}[{b + 4 * j}:{b + 4 * j + 3}]"

    def loads(u):
        if u < NG:
            a, b, o, dl = sWD, sH0, ORDER[u], 48 * 2048
        else:
            a, b, o, dl = sIT, sU0, (u - NG if u < 17 else -1), 21 * 2048
        L = [(f"s_add_u32 s{sb0}, s{b}, {(o * 2048) & 0xffffffff}", None), (f"s_add_u32 s{sb1}, s{sb0}, {dl}", None),
             (f"s_add_u32 s{sa}, s{a}, {(o * 40960) & 0xffffffff}", None), (f"s_add_u32 s{sa4}, s{sa}, 4096", None)]
        for j in range(2):
            L.append((f"buffer_load_dwordx4 {fr(u, 5 + j)}, v{vL16}, {sr(SWS)}, s{sb0} offen offset:{j * 1024} sc1", None))
        for j in range(2):
            L.append((f"buffer_load_dwordx4 {fr(u, 7 + j)}, v{vL16}, {sr(SWS)}, s{sb1} offen offset:{j * 1024} sc1", None))
        for j in range(4):
            L.append((f"buffer_load_dwordx4 {fr(u, j)}, v{vL16}, {sr(SWS)}, s{sa} offen offset:{j * 1024} sc1", None))
        L.append((f"buffer_load_dwordx4 {fr(u, 4)}, v{vL16}, {sr(SWS)}, s{sa4} offen sc1", None))
        return L

    def weave(main, fill, start=0, step=1):
        fill = list(fill)
        for n, m in enumerate(main):
            p(m)
            if n >= start and (n - start) % step == 0:
                while fill and fill[0][0].startswith('s_'):
                    emit([fill.pop(0)])
                if fill:
                    emit([fill.pop(0)])
        emit(fill)

    poll_check(vFA4, f"v{vPA}", SWS, 0, 1, x4=True)
    poll_check(vFH1, f"v{vPH}", SWS, 0, 1)
    p(f"v_mov_b32 {t(31)}, 2")

    aP2 = 160
    vFLB = vXR + 1
    p(f"s_cmp_ge_u32 s{sJOB}, 168\ns_cbranch_scc1 L_nop2")
    r2 = p.opt_begin()
    p(f"s_mul_i32 s5, s{sK1}, 21\ns_add_u32 s5, s5, s{sT2}\ns_lshl_b32 s5, s5, 12\ns_add_u32 s5, s5, {WS_T}")
    for k in range(4):
        p(f"buffer_load_dwordx4 {vr(vIN + 4 * k)}, v{vL16}, {sr(SWS)}, s5 offen offset:{k * 1024} sc1")
    emit(loads(0))
    for i in range(16):
        p(f"ds_read_b128 {ar(aP2 + 4 * i)}, v{vL16} offset:{P2C + i * 1024}")
    vEX2 = vXR + 2
    p(f"v_lshrrev_b32 {t(0)}, 4, v0\nv_and_b32 {t(2)}, 15, v0\nv_lshlrev_b32 {t(1)}, 10, {t(0)}\nv_lshl_add_u32 {t(1)}, {t(2)}, 4, {t(1)}")
    p(f"s_lshl_b32 s5, s{sW}, 2\ns_add_u32 s5, s5, {P2X}\nv_add_u32 v{vEX2}, s5, {t(1)}")
    p(f"s_mul_i32 s5, s{sW}, 168\ns_lshl_b32 s6, s{sT2}, 3\ns_add_u32 s5, s5, s6\ns_add_u32 s5, s5, s{sQ}\ns_lshl_b32 s5, s5, 2\ns_add_u32 s5, s5, {FL_B}")
    p(f"v_mov_b32 {t(3)}, s5\nv_cmp_eq_u32 vcc, 0, v0\ns_nop 1\nv_cndmask_b32 v{vFLB}, v{vPOL}, {t(3)}, vcc")
    for i in range(32):
        p(f"v_lshlrev_b32 v{vWR + i}, 16, v{vWR + i}")
    for i in range(16):
        p(f"v_alignbit_b32 v{vIN2 + i}, v{vIN + i}, v{vIN + i}, 16")
        p(f"v_xor_b32 v{vIN2 + i}, 0x80000000, v{vIN2 + i}")
    p(f"buffer_store_dword {t(31)}, v{vFLH}, {sr(SWS)}, 0 offen sc1")

    def dft64(bre, bim):
        L = []
        for k in range(4):
            for mt in range(4):
                for part, b in ((0, bre), (1, bim)):
                    d = vX + 16 * part + 4 * mt
                    c = "0" if k == 0 else vr(d)
                    L.append(f"v_mfma_f32_16x16x32_bf16 {vr(d)}, {ar(aP2 + 16 * mt + 4 * k)}, {vr(b + 4 * k)}, {c}")
        return L

    weave(dft64(vIN, vIN2), loads(1), 0, 3)
    for i in range(16):
        xr, xi, wr_, wi_ = f"v{vX + i}", f"v{vX + 16 + i}", f"v{vWR + i}", f"v{vWI + i}"
        a, b = t(2 * (i % 4)), t(2 * (i % 4) + 1)
        p(f"v_mul_f32 {a}, {xr}, {wr_}\nv_mul_f32 {b}, {xr}, {wi_}")
        p(f"v_fma_f32 {a}, -{xi}, {wi_}, {a}\nv_fmac_f32 {b}, {xi}, {wr_}")
        p(f"v_cvt_pk_bf16_f32 v{vY + i}, {a}, -{b}\nv_cvt_pk_bf16_f32 v{vY + 16 + i}, {b}, {a}")
    weave(dft64(vY, vY + 16), [], 0, 3)
    for i in range(16):
        p(f"v_cvt_pk_bf16_f32 {t(i)}, v{vX + i}, v{vX + 16 + i}")
        p(f"ds_write_b32 v{vEX2}, {t(i)} offset:{(16 * (i >> 2) + (i & 3)) * 256}")
    p(f"s_lshl_b32 s5, s{sW}, 12\ns_add_u32 s5, s5, {P2X}\nv_add_u32 v{vEX2 + 1}, s5, v{vL16}")
    p(f"v_lshrrev_b32 {t(16)}, 4, v0\ns_lshl_b32 s5, s{sW}, 4\nv_add_u32 {t(16)}, s5, {t(16)}\nv_mul_u32_u24 {t(16)}, {21 * 2048}, {t(16)}")
    p(f"v_and_b32 {t(17)}, 15, v0\nv_lshl_add_u32 {t(16)}, {t(17)}, 4, {t(16)}")
    p(f"s_lshl_b32 s5, s{sT2}, 3\ns_add_u32 s5, s5, s{sQ}\ns_lshl_b32 s5, s5, 8\ns_add_u32 s5, s5, {WS_U}")
    p.wait_lds()
    p("s_barrier")
    for e in range(4):
        p(f"ds_read_b128 {vr(vIN + 4 * e)}, v{vEX2 + 1} offset:{e * 1024}")
    for e in range(4):
        p(f"buffer_store_dwordx4 {vr(vIN + 4 * e)}, {t(16)}, {sr(SWS)}, s5 offen sc1", tag='U')
        if e < 3:
            p(f"s_add_u32 s5, s5, {4 * 21 * 2048}")
    p("s_branch L_p3")
    p.opt_end()
    p("L_nop2:")
    p.opt_begin(excl=r2)
    p(f"v_mov_b32 v{vFLB}, {OOB}")
    emit(loads(0))
    p.wait_tag('hB')
    p(f"buffer_store_dword {t(31)}, v{vFLH}, {sr(SWS)}, 0 offen sc1")
    emit(loads(1))
    p.opt_end()
    p("L_p3:")
    stamp(p, "p3")
    stamp(p)

    vZ, vZP, vK = 124, 156, 60
    vFB1, vPB = vT + 29, vT + 30
    cg = []
    cg += [f"v_and_b32 {t(0)}, 15, v0", f"v_lshlrev_b32 {t(0)}, 6, {t(0)}", f"s_lshl_b32 s5, s{sPR}, 1", f"v_add_u32 {t(0)}, s5, {t(0)}",
           f"v_cvt_f32_u32 {t(0)}, {t(0)}", f"v_mul_f32 {t(0)}, {hx(1.0 / 2048)}, {t(0)}", f"v_add_f32 {t(1)}, {hx(1.0 / 2048)}, {t(0)}",
           f"v_lshrrev_b32 {t(2)}, 4, v0", f"v_lshlrev_b32 {t(2)}, 2, {t(2)}", f"v_cvt_f32_u32 {t(2)}, {t(2)}"]
    for e in range(2):
        for k in range(2):
            for r in range(4):
                cg += [f"v_add_f32 {t(3)}, {hx(16.0 * k + r)}, {t(2)}", f"v_mul_f32 {t(3)}, {t(3)}, {t(e)}", f"v_fract_f32 {t(3)}, {t(3)}",
                       f"v_cos_f32 {t(4)}, {t(3)}", f"v_sin_f32 {t(5)}, {t(3)}"]
                for hf in range(2):
                    n = hf and (r & 1)
                    c, mc = (t(4), '-' + t(4)) if not n else ('-' + t(4), t(4))
                    s_, ms = (t(5), '-' + t(5)) if not n else ('-' + t(5), t(5))
                    b = vK + 32 * e + 16 * hf + 4 * k + r
                    cg += [f"v_cvt_pk_bf16_f32 v{b}, {c}, {ms}", f"v_cvt_pk_bf16_f32 v{b + 8}, {s_}, {c}"]
    cg += [f"v_lshrrev_b32 {t(6)}, 3, v0", f"v_min_u32 {t(6)}, 5, {t(6)}", f"s_mul_i32 s5, s{sW}, 5", f"s_add_u32 s5, s5, 1",
           f"v_add_u32 {t(7)}, s5, {t(6)}", f"v_cmp_eq_u32 vcc, 5, {t(6)}", f"v_and_b32 {t(8)}, 7, v0", f"s_lshr_b32 s5, s{sPR}, 3",
           f"v_cndmask_b32 {t(7)}, {t(7)}, 0, vcc", f"s_mul_i32 s5, s5, 168", f"v_lshl_add_u32 {t(7)}, {t(7)}, 3, {t(8)}",
           f"v_add_u32 {t(7)}, s5, {t(7)}", f"v_lshlrev_b32 {t(7)}, 2, {t(7)}", f"v_add_u32 v{vPB}, {FL_B}, {t(7)}"]
    cg = [(x, None) for x in cg]

    def main_mfma(u, bsrc, first):
        L = []
        for st in range(4):
            for dt in range(5):
                acc = ar(4 * (4 * dt + st))
                c = "0" if first else acc
                L.append(f"v_mfma_f32_16x16x32_bf16 {acc}, {fr(u, dt)}, {bsrc(st)}, {c}")
        return L

    def mix(a, b):
        out = []
        a, b = list(a), list(b)
        while a or b:
            while a and a[0][0].startswith('s_'):
                out.append(a.pop(0))
            if a:
                out.append(a.pop(0))
            if b:
                out.append(b.pop(0))
        return out

    per = (len(cg) + 7) // 8
    for u in range(NG):
        if u + 2 == 8:
            poll_check(vFH1 + 0, f"v{vPH}", SWS, 0, 2)
        if u + 2 == NG:
            poll_check(vFB1, f"v{vPB}", SWS, 0, 1)
        fill = loads(u + 2)
        extra = cg[(u - 1) * per:u * per] if 1 <= u <= 8 else []
        main = main_mfma(u, lambda st: fr(u, 5 + st), u == 0)
        for n, m in enumerate(main):
            p(m)
            if n % 2 == 0:
                while fill and fill[0][0].startswith('s_'):
                    emit([fill.pop(0)])
                if fill:
                    emit([fill.pop(0)])
            else:
                emit(extra[:2])
                extra = extra[2:]
        emit(fill)
        emit(extra)
        if u == 1:
            p.wait_tag('U')
            p(f"buffer_store_dword v{vONE}, v{vFLB}, {sr(SWS)}, 0 offen sc1")
        if u == 4:
            poll_issue(vFH1, f"v{vPH}", SWS, 0)
        if u == 8:
            poll_issue(vFB1, f"v{vPB}", SWS, 0)
    stamp(p, "p3")

    def inv_unit(u, fill):
        L = []
        for k in range(2):
            for st in range(4):
                e, hf = st >> 1, st & 1
                for part in range(2):
                    d = vr(vZ + 8 * st + 4 * part)
                    c = "0" if k == 0 else d
                    L.append(f"v_mfma_f32_16x16x32_bf16 {d}, {fr(u, 5 + 2 * e + k)}, {vr(vK + 32 * e + 16 * hf + 8 * part + 4 * k)}, {c}")
        fill = list(fill)
        h = len(fill) // 2
        weave(L, fill[:h + 2], 0, 3)
        for st in range(4):
            for r in range(4):
                p(f"v_cvt_pk_bf16_f32 v{vZP + 4 * st + r}, v{vZ + 8 * st + r}, v{vZ + 8 * st + 4 + r}")
        weave(main_mfma(u, lambda st: vr(vZP + 4 * st), False), fill[h + 2:], 0, 3)

    vLA, vGAo, vXI, vPW = vT + 8, vT + 12, vT + 16, vT + 11
    fin_addr = [f"v_and_b32 {t(0)}, 15, v0", f"v_mul_u32_u24 {t(0)}, {RS}, {t(0)}", f"v_lshrrev_b32 {t(1)}, 4, v0",
                f"v_lshl_add_u32 {t(0)}, {t(1)}, 4, {t(0)}", f"s_mul_i32 s5, s{sW}, {64 * RS}", f"v_add_u32 v{vPW}, s5, {t(0)}",
                f"s_lshl_b32 s5, s{sW}, 6", f"v_add_u32 {t(1)}, s5, v0",
                f"s_mul_i32 s6, s{sNB}, 160", f"s_mul_i32 s7, s{sPR}, 2560", f"s_add_u32 s6, s6, s7"]
    for it in range(3):
        fin_addr += [f"v_add_u32 {t(2)}, {256 * it}, {t(1)}", f"v_mul_u32_u24 {t(3)}, 6554, {t(2)}", f"v_lshrrev_b32 {t(3)}, 16, {t(3)}",
                     f"v_mul_u32_u24 {t(4)}, 10, {t(3)}", f"v_sub_u32 {t(4)}, {t(2)}, {t(4)}",
                     f"v_mul_u32_u24 {t(5)}, {RS}, {t(3)}", f"v_lshl_add_u32 v{vLA + it}, {t(4)}, 5, {t(5)}",
                     f"v_and_b32 {t(5)}, 31, {t(3)}", f"v_lshlrev_b32 {t(5)}, 6, {t(5)}", f"v_lshrrev_b32 {t(6)}, 5, {t(3)}",
                     f"v_add_u32 {t(5)}, {t(5)}, {t(6)}", f"v_mul_u32_u24 {t(5)}, 1280, {t(5)}",
                     f"v_lshl_add_u32 {t(5)}, {t(4)}, 4, {t(5)}", f"v_add_u32 v{vGAo + it}, s6, {t(5)}"]
    fin_addr += [f"s_cmp_ge_u32 s{sW}, 2", f"s_cselect_b32 s5, {OOB}, 0", f"v_or_b32 v{vGAo + 2}, s5, v{vGAo + 2}"]
    xl = [(f"buffer_load_dwordx4 {vr(vXI + 4 * it)}, v{vGAo + it}, {sr(SX)}, 0 offen", None) for it in range(3)]

    for u in range(NG, 17):
        if u + 2 < 17:
            inv_unit(u, loads(u + 2))
        elif u + 2 == 17:
            p(f"s_cmp_lg_u32 s{sW}, 0\ns_cbranch_scc1 L_nold")
            p.opt_begin()
            emit(loads(17))
            p.opt_end()
            p("L_nold:")
            for x in fin_addr:
                p(x)
            inv_unit(u, xl)
        else:
            inv_unit(u, [])
    p(f"s_cmp_lg_u32 s{sW}, 0\ns_cbranch_scc1 L_nou")
    p.opt_begin()
    inv_unit(17, [])
    p.opt_end()
    p("L_nou:")
    stamp(p, "p3")
    stamp(p)

    for st in range(4):
        for dt in range(5):
            p(f"ds_write_b128 v{vPW}, {ar(4 * (4 * dt + st))} offset:{st * 16 * RS + dt * 64}")
    p.wait_lds()
    p("s_barrier")
    stamp(p, "p3")

    def fin_reads(it):
        b = 60 + 32 * it
        for w in range(4):
            for hh in range(2):
                p(f"ds_read_b128 {vr(b + 8 * w + 4 * hh)}, v{vLA + it} offset:{w * 64 * RS + 16 * hh}")

    def fin(it):
        b = 60 + 32 * it
        o = 160 + 8 * it
        for j in range(4):
            p(f"v_lshlrev_b32 v{o + 2 * j}, 16, v{vXI + 4 * it + j}\nv_and_b32 v{o + 2 * j + 1}, 0xffff0000, v{vXI + 4 * it + j}")
        for w in range(4):
            for j in range(0, 8, 2):
                p(f"v_pk_add_f32 {vr(o + j, 2)}, {vr(o + j, 2)}, {vr(b + 8 * w + j, 2)}")
        for j in range(4):
            p(f"v_cvt_pk_bf16_f32 v{b + j}, v{o + 2 * j}, v{o + 2 * j + 1}")
        p(f"buffer_store_dwordx4 {vr(b)}, v{vGAo + it}, {sr(SO)}, 0 offen")

    fin_reads(0)
    fin_reads(1)
    fin(0)
    p(f"s_cmp_ge_u32 s{sW}, 2\ns_cbranch_scc1 L_nof0")
    p.opt_begin()
    fin_reads(2)
    p.opt_end()
    p("L_nof0:")
    fin(1)
    p(f"s_cmp_ge_u32 s{sW}, 2\ns_cbranch_scc1 L_nof")
    p.opt_begin()
    fin(2)
    p.opt_end()
    p("L_nof:")
    stamp_flush(p)
    p(f"{end}:")
    p("s_endpgm")


def build():
    name = NAME + "_kernel"
    out = [f"; @launch grid=(256,1,1) block=(256,1,1) lds={LDSB}",
           '.amdgcn_target "amdgcn-amd-amdhsa--gfx950"\n.text',
           f".globl {name}\n.p2align 8\n.type {name},@function\n{name}:"]
    p = Prog()
    kernel(p)
    out.append(p.text())
    out.append(f""".section .rodata,"a"
.p2align 6
.amdhsa_kernel {name}
  .amdhsa_next_free_vgpr 512
  .amdhsa_next_free_sgpr 102
  .amdhsa_accum_offset 256
  .amdhsa_group_segment_fixed_size 0
  .amdhsa_kernarg_size 80
  .amdhsa_user_sgpr_count 2
  .amdhsa_user_sgpr_kernarg_segment_ptr 1
  .amdhsa_system_sgpr_workgroup_id_x 1
.end_amdhsa_kernel
""")
    return "\n".join(out)


if __name__ == "__main__":
    dst = sys.argv[1] if len(sys.argv) > 1 else f"cdna_kernels/{NAME}.s"
    for a in sys.argv[2:]:
        if a == "stamps":
            STAMPS = True
        elif a.startswith("zoom="):
            ZOOM = a[5:]
        else:
            k, v = a.split("=")
            OPT[k] = int(v)
    open(dst, "w").write(build())
```

```python
import struct, sys
from asmlib import Prog

NAME = "parallel_sum__spectral_gfnet__glu_gated_reglu__prompt"
S, D, F, NT = 2048, 640, 1536, 21

WS_T, WS_U, WS_H, WS_WD, WS_IT = 0, 0x300000, 0x600000, 0xC00000, 0xE00000
WS_FL = 0xF80000
FL_A, FL_H, FL_B = WS_FL, WS_FL + 1024, WS_FL + 5120
OOB = 0x7FFFFF00
SPIN_MAX = 1 << 20

OPT = dict(pf_code=True, pf_x=True, pf_w=True, pf_f=True)


def f2u(x):
    return struct.unpack('<I', struct.pack('<f', x))[0]


def hx(x):
    return hex(f2u(x))


def vr(i, n=4): return f"v[{i}:{i + n - 1}]"
def ar(i, n=4): return f"a[{i}:{i + n - 1}]"
def sr(i, n=4): return f"s[{i}:{i + n - 1}]"


SX, SG, SU, SD, SWS, SO, SWR, SWI = 28, 32, 36, 40, 44, 48, 52, 56
SDBG = 24
sW = 60

STAMPS = False
ZOOM = ""
WS_ST = 0xF00000
_nst = [0]
STAMP_BASE = 84


def stamp(p, grp=""):
    if STAMPS and grp in (ZOOM, "*"):
        i = _nst[0]
        assert i < 9
        p(f"s_memrealtime s[{STAMP_BASE + 2 * i}:{STAMP_BASE + 1 + 2 * i}]")
        _nst[0] += 1


def stamp_flush(p):
    if STAMPS:
        p.wait_all_vm()
        stamp(p, "*")
        p("s_waitcnt lgkmcnt(0)")
        n = _nst[0]
        p(f"s_lshl_b32 s3, s2, 2\ns_add_u32 s3, s3, s{sW}\ns_lshl_b32 s3, s3, 6\ns_add_u32 s3, s3, {WS_ST}")
        p("v_mov_b32 v1, 0")
        for i in range(n):
            p(f"v_mov_b32 v2, s{STAMP_BASE + 2 * i}")
            p(f"buffer_store_dword v2, v1, {sr(SWS)}, s3 offen offset:{4 * i}")
        if OPT.get('dbg'):
            p(f"v_cmp_eq_u32 vcc, 0, v0\ns_cmp_eq_u32 s{sW}, 0\ns_cselect_b32 s5, 0, 512\nv_mov_b32 v3, 512\nv_mov_b32 v4, s5\nv_cndmask_b32 v1, v3, v4, vcc")
            p(f"s_not_b32 s5, s{STAMP_BASE}\nv_mov_b32 v2, s5\nbuffer_atomic_umax v2, v1, {sr(SDBG)}, 0 offen offset:4 sc1")
            for i in range(n):
                p(f"v_mov_b32 v{5 + i}, s{STAMP_BASE + 2 * i}")
                p(f"buffer_atomic_umax v{5 + i}, v1, {sr(SDBG)}, 0 offen offset:{8 + 4 * i} sc1")
        _nst[0] = 0


TAB, XS, RING, MISC = 0, 40960, 90112, 155648
EX0, EX1 = RING + 6 * 8192, RING + 7 * 8192
P2C = TAB + 20480
P2X = RING
CSX = MISC
LDSB = 163840
RS = 336


def kernel(p):
    end = "L_end"
    sRB, sCB, sS2, sT0, sT1, sFA, sFB = 61, 62, 63, 64, 65, 66, 67
    sA, sB, sM0X, sM0R, sONE, sHA, sHB = 68, 69, 70, 71, 72, 73, 74
    sT32, sC5, sJOB, sSPIN = 75, 76, 77, 78
    sPR, sNB = 79, 80
    sQ, sT2, sK1 = 81, 82, 83
    vXG = 2
    vXR = 6
    vL16 = 10
    vGA, vGB = 11, 12
    vRA, vRB = 13, 14
    vCA, vCB_ = 15, 16
    vSUM, vSQ = 17, 18
    vFLA = 19
    vNM, vR2 = 20, 22
    vSGN = 24
    vDC, vEXW, vTST = 21, 23, 25
    vHST, vSTA = 26, 27
    vT = 28
    vC1 = 60
    vXT = 76
    vTB = 108
    vACC = 124
    vFR = 188
    vCF = 220
    vCS = 228
    vIND = 232
    vRR = 236
    vFLH, vONE, vPOL = 252, 253, 254
    vPF = 255
    t = lambda i: f"v{vT + i}"

    p.reset()
    p(f"s_cmp_ge_u32 s2, 256\ns_cbranch_scc1 {end}")
    stamp(p, "*")
    p("s_load_dwordx16 s[8:23], s[0:1], 0")
    p("s_load_dwordx4 s[4:7], s[0:1], 64")
    p("v_lshrrev_b32 v1, 6, v0")
    p("v_and_b32 v0, 63, v0")
    p(f"v_readfirstlane_b32 s{sW}, v1")
    p("s_and_b32 s3, s2, 7\ns_lshr_b32 s24, s2, 3")
    p(f"s_and_b32 s25, s3, 1\ns_lshl_b32 s25, s25, 3\ns_and_b32 s26, s24, 7\ns_add_u32 s{sRB}, s25, s26")
    p(f"s_lshr_b32 s25, s3, 1\ns_lshl_b32 s25, s25, 2\ns_lshr_b32 s26, s24, 3\ns_add_u32 s{sCB}, s25, s26")
    p(f"s_lshr_b32 s25, s3, 1\ns_lshl_b32 s25, s25, 3\ns_and_b32 s26, s24, 7\ns_add_u32 s{sPR}, s25, s26")
    p(f"s_and_b32 s25, s3, 1\ns_lshl_b32 s25, s25, 2\ns_lshr_b32 s26, s24, 3\ns_add_u32 s{sNB}, s25, s26")
    p(f"s_lshl_b32 s{sS2}, s{sRB}, 2\ns_add_u32 s{sS2}, s{sS2}, s{sW}")
    p(f"s_mov_b32 s{sT0}, s{sCB}")
    p(f"s_lshr_b32 s25, s{sCB}, 2\ns_add_u32 s25, s25, 16\ns_and_b32 s26, s{sCB}, 3\ns_cmp_eq_u32 s26, 0")
    p(f"s_cselect_b32 s{sT1}, s25, 0\ns_cmp_eq_u32 s{sCB}, 1\ns_cselect_b32 s{sT1}, 20, s{sT1}")
    p(f"s_lshr_b32 s25, s{sCB}, 2\ns_add_u32 s25, s25, 2\ns_sub_u32 s25, s{sCB}, s25")
    p(f"s_lshl_b32 s25, s25, 4\ns_add_u32 s{sJOB}, s25, s{sRB}")
    p(f"s_cmp_lg_u32 s{sT1}, 0\ns_cselect_b32 s{sJOB}, 255, s{sJOB}")
    p(f"s_and_b32 s{sQ}, s{sJOB}, 7\ns_lshr_b32 s{sT2}, s{sJOB}, 3")
    p(f"s_lshl_b32 s{sK1}, s{sQ}, 2\ns_add_u32 s{sK1}, s{sK1}, s{sW}")
    p(f"s_mul_i32 s25, s{sCB}, 96\ns_and_b32 s26, s{sCB}, 1\ns_lshl_b32 s27, s26, 5\ns_add_u32 s{sFA}, s25, s27")
    p(f"s_xor_b32 s26, s26, 1\ns_lshl_b32 s26, s26, 6\ns_add_u32 s{sFB}, s25, s26")
    p(f"s_mov_b32 s{sONE}, 0x3f803f80")
    p(f"s_mul_hi_u32 s{sT32}, s2, {(2**32 + 4) // 5}\ns_mul_i32 s25, s{sT32}, 5\ns_sub_u32 s{sC5}, s2, s25")
    p(f"s_mul_i32 s{sM0X}, s{sW}, 12288\ns_add_u32 s{sM0X}, s{sM0X}, {XS}")
    p(f"s_lshl_b32 s{sM0R}, s{sW}, 11\ns_add_u32 s{sM0R}, s{sM0R}, {RING}")

    p(f"v_lshrrev_b32 {t(0)}, 3, v0\nv_lshlrev_b32 {t(0)}, 6, {t(0)}\nv_add_u32 {t(0)}, s{sS2}, {t(0)}")
    p(f"v_mul_u32_u24 {t(0)}, 1280, {t(0)}")
    p(f"v_and_b32 {t(1)}, 7, v0\nv_lshrrev_b32 {t(2)}, 4, v0\nv_xor_b32 {t(3)}, {t(1)}, {t(2)}\nv_xor_b32 {t(4)}, 4, {t(3)}")
    for i in range(4):
        p(f"v_lshl_add_u32 v{vXG + i}, {t(3 + (i & 1))}, 4, {t(0)}")
        if i:
            p(f"v_add_u32 v{vXG + i}, {i * 655360 - i * 1024}, v{vXG + i}")
    p(f"v_lshlrev_b32 v{vL16}, 4, v0")
    p(f"s_lshl_b32 s3, s2, 2\ns_add_u32 s3, s3, s{sW}")

    def touch(srd, nlines, tmp):
        p(f"s_mul_i32 s5, s3, {nlines * 128}\nv_cmp_gt_u32 vcc, {nlines}, v0\nv_lshl_add_u32 {tmp}, v0, 7, s5")
        p(f"v_cndmask_b32 {tmp}, v{vPOL}, {tmp}, vcc")
        p(f"buffer_load_dword v{vPF}, {tmp}, {sr(srd)}, 0 offen", tag='pf', junk=True)

    p(f"v_mov_b32 v{vPOL}, {OOB}\nv_mov_b32 v{vONE}, 1")
    for srd, src, size in ((SX, 8, S * D * 2), (SWS, 6, 0x10000000), (SG, 16, D * F * 2), (SU, 18, D * F * 2), (SD, 20, D * F * 2),
                           (SO, 22, S * D * 2), (SWR, 10, S * 321 * 2), (SWI, 12, S * 321 * 2), (SDBG, 4, 256)):
        p(f"s_mov_b32 s{srd}, s{src}\ns_mov_b32 s{srd + 1}, s{src + 1}\ns_mov_b32 s{srd + 2}, {size}\ns_mov_b32 s{srd + 3}, 0x20000")
    stamp(p, "pro")

    def x_dma(sl, part=(0, 1, 2, 3), head=True):
        if head:
            p(f"s_add_u32 m0, s{sM0X}, {(sl % 3) * 4096}")
            p(f"s_movk_i32 s{sA}, {sl * 128}")
        for i in part:
            p(f"buffer_load_dwordx4 v{vXG + i}, {sr(SX)}, s{sA} offen offset:{i * 1024} lds", tag=('x', sl))

    if OPT['pf_x']:
        touch(SX, 20, t(6))
    x_dma(0)
    p("s_cmp_lg_u32 s2, 0\ns_cbranch_scc1 L_noclr")
    p.opt_begin()
    for i in range(4):
        p(f"v_mov_b32 {t(8 + i)}, 0")
    p(f"s_lshl_b32 s5, s{sW}, 11\ns_add_u32 s5, s5, {WS_FL}")
    for i in range(2):
        p(f"buffer_store_dwordx4 {vr(vT + 8)}, v{vL16}, {sr(SWS)}, s5 offen offset:{i * 1024} sc1", tag='clr')
    p.opt_end()
    p("L_noclr:")
    if OPT['pf_code']:
        p("s_getpc_b64 s[12:13]\nL_pc:\ns_mov_b32 s14, L_end-L_pc\ns_mov_b32 s15, 0x20000")
        p(f"s_lshr_b32 s5, s2, 3\ns_lshl_b32 s5, s5, 2\ns_add_u32 s5, s5, s{sW}\ns_mul_i32 s5, s5, 384")
        p(f"v_cmp_gt_u32 vcc, 3, v0\nv_lshl_add_u32 {t(6)}, v0, 7, s5\nv_cndmask_b32 {t(6)}, v{vPOL}, {t(6)}, vcc")
        p(f"buffer_load_dword v{vPF}, {t(6)}, s[12:15], 0 offen", tag='pf', junk=True)
    stamp(p, "pro")

    p(f"v_lshrrev_b32 {t(0)}, 2, v0\nv_and_b32 {t(1)}, 7, {t(0)}")
    p(f"s_lshl_b32 s5, s{sW}, 3\nv_add_u32 {t(1)}, s5, {t(1)}\nv_mul_u32_u24 {t(1)}, 3072, {t(1)}")
    p(f"v_and_b32 {t(2)}, 3, v0\nv_lshlrev_b32 {t(2)}, 4, {t(2)}")
    p(f"v_lshrrev_b32 {t(3)}, 5, v0\nv_lshl_add_u32 {t(3)}, {t(3)}, 6, {t(2)}")
    p(f"s_lshl_b32 s5, s{sFA}, 1\nv_add3_u32 v{vGA}, {t(1)}, {t(3)}, s5")
    p(f"s_lshl_b32 s5, s{sW}, 4\nv_add_u32 {t(1)}, s5, {t(0)}\nv_mul_u32_u24 {t(1)}, 3072, {t(1)}")
    p(f"s_lshl_b32 s5, s{sFB}, 1\nv_add3_u32 v{vGB}, {t(1)}, {t(2)}, s5")

    def ring_piece(st, mat):
        if st >= 30:
            return []
        slot = (st % 8) * 8192
        va, off = (vGA, st * 98304) if st < 20 else (vGB, (st - 20) * 196608)
        L = []
        if mat == 0:
            L.append((f"s_mov_b32 s{sB}, {off}", None))
        L.append((f"s_add_u32 m0, s{sM0R}, {slot + 1024 * mat}", None))
        L.append((f"buffer_load_dwordx4 v{va}, {sr(SU if mat else SG)}, s{sB} offen lds", ('w', st)))
        return L

    def emit(L):
        for text, tag in L:
            p(text, tag=tag)

    def ring_dma(st):
        emit(ring_piece(st, 0) + ring_piece(st, 1))

    p(f"v_and_b32 {t(0)}, 31, v0\nv_lshrrev_b32 {t(1)}, 5, v0")
    p(f"v_lshrrev_b32 {t(2)}, 1, {t(0)}\nv_and_b32 {t(2)}, 7, {t(2)}\nv_xor_b32 {t(2)}, {t(2)}, {t(1)}")
    p(f"v_lshlrev_b32 {t(3)}, 7, {t(0)}\nv_add_u32 {t(3)}, s{sM0X}, {t(3)}")
    for tt in range(4):
        p(f"v_xor_b32 {t(4)}, {2 * tt}, {t(2)}")
        p(f"v_lshl_add_u32 v{vXR + tt}, {t(4)}, 4, {t(3)}")
    p(f"v_and_b32 {t(2)}, 15, v0\nv_lshrrev_b32 {t(3)}, 2, {t(2)}\nv_lshlrev_b32 {t(3)}, 6, {t(3)}")
    p(f"v_and_b32 {t(2)}, 3, v0\nv_lshl_add_u32 {t(3)}, {t(2)}, 3, {t(3)}")
    p(f"v_bfe_u32 {t(2)}, v0, 4, 1\nv_lshl_add_u32 {t(3)}, {t(2)}, 5, {t(3)}")
    p(f"v_add_u32 {t(3)}, {RING}, {t(3)}")
    p(f"v_lshl_add_u32 v{vRA}, {t(1)}, 11, {t(3)}")
    p(f"v_lshl_add_u32 v{vRB}, {t(1)}, 9, {t(3)}")
    p(f"s_lshl_b32 s5, s{sW}, 9\nv_add_u32 v{vCA}, s5, v{vRA}")
    p(f"s_and_b32 s5, s{sW}, 1\ns_lshl_b32 s5, s5, 10\ns_lshr_b32 s6, s{sW}, 1\ns_lshl_b32 s6, s6, 11\ns_add_u32 s5, s5, s6")
    p(f"v_add_u32 v{vCB_}, s5, v{vRB}")
    p(f"v_and_b32 {t(2)}, 15, v0\nv_bfe_u32 {t(3)}, v0, 4, 1\nv_cmp_eq_u32 vcc, {t(2)}, {t(3)}")
    p(f"v_mov_b32 {t(4)}, s{sONE}")
    p(f"v_cndmask_b32 v{vIND}, 0, {t(4)}, vcc")
    for i in range(1, 4):
        p(f"v_mov_b32 v{vIND + i}, v{vIND}")
    p(f"v_lshlrev_b32 {t(4)}, 2, {t(1)}\nv_add_u32 {t(4)}, {t(4)}, {t(3)}\nv_lshlrev_b32 {t(4)}, 8, {t(4)}")
    p(f"v_lshl_add_u32 {t(4)}, {t(2)}, 4, {t(4)}\ns_lshl_b32 s5, s{sW}, 2\ns_add_u32 s5, s5, {EX0}\nv_add_u32 v{vEXW}, s5, {t(4)}")
    p(f"v_lshrrev_b32 {t(4)}, 4, v0\ns_lshl_b32 s5, s{sW}, 3\nv_add_u32 {t(4)}, s5, {t(4)}")
    p(f"s_mov_b32 s5, 86016\nv_mul_lo_u32 {t(4)}, {t(4)}, s5\nv_lshl_add_u32 v{vTST}, {t(2)}, 4, {t(4)}")
    p(f"v_lshlrev_b32 {t(4)}, 10, {t(3)}\nv_lshl_add_u32 {t(4)}, {t(1)}, 8, {t(4)}\nv_lshl_add_u32 v{vHST}, {t(2)}, 4, {t(4)}")
    p(f"s_mul_i32 s5, s{sS2}, 48\ns_lshr_b32 s6, s{sFA}, 5\ns_add_u32 s6, s6, s5\ns_lshl_b32 s6, s6, 11\ns_add_u32 s{sHA}, s6, {WS_H}")
    p(f"s_lshr_b32 s6, s{sFB}, 5\ns_add_u32 s6, s6, s5\ns_lshl_b32 s6, s6, 11\ns_add_u32 s{sHB}, s6, {WS_H}")
    p(f"v_and_b32 {t(4)}, 1, v0\nv_lshlrev_b32 {t(4)}, 31, {t(4)}\nv_or_b32 v{vSGN}, 0x3f800000, {t(4)}")
    p(f"v_cmp_eq_u32 vcc, 0, {t(0)}\nv_mov_b32 {t(4)}, {hx(-640.0)}\nv_cndmask_b32 v{vDC}, 0, {t(4)}, vcc")
    p(f"v_lshlrev_b32 {t(4)}, 4, {t(1)}\ns_add_u32 s5, s{sM0X}, 12032\nv_add_u32 v{vSTA}, s5, {t(4)}")
    p(f"v_mov_b32 v{vSUM}, 0\nv_mov_b32 v{vSQ}, 0")
    p(f"s_lshl_b32 s5, s{sCB}, 4\ns_add_u32 s5, s5, s{sRB}\ns_lshl_b32 s5, s5, 2\ns_add_u32 s5, s5, {FL_A}")
    p(f"s_cmp_eq_u32 s{sW}, 0\ns_cselect_b32 s5, s5, {OOB}")
    p(f"s_lshl_b32 s6, s{sS2}, 4\ns_add_u32 s6, s6, s{sCB}\ns_lshl_b32 s6, s6, 2\ns_add_u32 s6, s6, {FL_H}")
    p(f"v_mov_b32 {t(4)}, s5\nv_mov_b32 {t(6)}, s6\nv_cmp_eq_u32 vcc, 0, v0")
    p(f"v_cndmask_b32 v{vFLA}, v{vPOL}, {t(4)}, vcc\nv_cndmask_b32 v{vFLH}, v{vPOL}, {t(6)}, vcc")
    stamp(p, "pro")

    def gen_table(sT, base):
        p(f"v_and_b32 {t(0)}, 15, v0\ns_lshl_b32 s5, s{sT}, 4\nv_add_u32 {t(0)}, s5, {t(0)}")
        p(f"v_cmp_ge_u32 vcc, 320, {t(0)}\nv_cndmask_b32 {t(6)}, 0, -1, vcc")
        p(f"v_cvt_f32_u32 {t(1)}, {t(0)}\nv_mul_f32 {t(1)}, {hx(1.0 / 640)}, {t(1)}")
        p(f"v_lshrrev_b32 {t(2)}, 5, v0\nv_lshlrev_b32 {t(2)}, 3, {t(2)}\ns_mul_i32 s5, s{sW}, 80\nv_add_u32 {t(2)}, s5, {t(2)}")
        p(f"v_mul_u32_u24 {t(2)}, {t(2)}, {t(0)}\nv_cvt_f32_u32 {t(2)}, {t(2)}\nv_mul_f32 {t(2)}, {hx(1.0 / 640)}, {t(2)}")
        p(f"v_fract_f32 {t(2)}, {t(2)}")
        p(f"v_bfe_u32 {t(3)}, v0, 4, 1\nv_cvt_f32_u32 {t(3)}, {t(3)}\nv_fmac_f32 {t(2)}, {hx(0.25)}, {t(3)}")
        p(f"v_mul_f32 {t(4)}, {hx(16.0)}, {t(1)}\nv_fract_f32 {t(4)}, {t(4)}")
        p(f"s_mul_i32 s5, s{sW}, 5120\nv_add_u32 {t(7)}, s5, v{vL16}")
        for tt in range(5):
            a = vXT + 16 * (tt & 1)
            p(f"v_cos_f32 v{a}, {t(2)}")
            p(f"v_add_f32 v{a + 1}, {t(2)}, {t(1)}")
            for j in range(1, 8):
                if j < 7:
                    p(f"v_add_f32 v{a + j + 1}, v{a + j}, {t(1)}")
                p(f"v_cos_f32 v{a + j}, v{a + j}")
            p(f"v_add_f32 {t(2)}, {t(2)}, {t(4)}")
            for j in range(4):
                p(f"v_cvt_pk_bf16_f32 v{a + 8 + j}, v{a + 2 * j}, v{a + 2 * j + 1}")
            for j in range(4):
                p(f"v_and_b32 v{a + 8 + j}, {t(6)}, v{a + 8 + j}")
            p(f"ds_write_b128 {t(7)}, {vr(a + 8)} offset:{base + tt * 1024}")

    gen_table(sT0, TAB)
    stamp(p, "pro")
    x_dma(1)
    p(f"s_cmp_eq_u32 s{sT1}, 0\ns_cbranch_scc1 L_notab1")
    p.opt_begin()
    gen_table(sT1, TAB + 20480)
    p("s_branch L_tabs")
    p.opt_end()
    p("L_notab1:")
    p.opt_begin()
    p(f"v_and_b32 {t(2)}, 15, v0\nv_cvt_f32_u32 {t(3)}, {t(2)}\nv_mul_f32 {t(3)}, {hx(1.0 / 64)}, {t(3)}")
    p(f"v_lshrrev_b32 {t(0)}, 4, v0\nv_lshlrev_b32 {t(4)}, 2, {t(0)}\ns_lshl_b32 s5, s{sW}, 4\nv_add_u32 {t(4)}, s5, {t(4)}\nv_cvt_f32_u32 {t(4)}, {t(4)}")
    for r in range(4):
        p(f"v_add_f32 {t(8)}, {hx(float(r))}, {t(4)}\nv_mul_f32 {t(8)}, {t(8)}, {t(3)}\nv_fract_f32 {t(8)}, {t(8)}")
        p(f"v_cos_f32 {t(6)}, {t(8)}\nv_sin_f32 {t(7)}, {t(8)}")
        for mt in range(4):
            c, s_ = t(6), t(7)
            lo, hi = [(c, s_), ('-' + s_, c), ('-' + c, '-' + s_), (s_, '-' + c)][(mt * r) % 4]
            p(f"v_cvt_pk_bf16_f32 v{vXT + 4 * mt + r}, {lo}, {hi}")
    p(f"s_lshl_b32 s5, s{sW}, 10\nv_add_u32 {t(7)}, s5, v{vL16}")
    for mt in range(4):
        p(f"ds_write_b128 {t(7)}, {vr(vXT + 4 * mt)} offset:{P2C + mt * 4096}")
    p.opt_end()
    p("L_tabs:")
    stamp(p, "pro")

    p(f"v_and_b32 {t(0)}, 31, v0\nv_cvt_f32_u32 {t(1)}, {t(0)}\nv_mul_f32 {t(1)}, {hx(1.0 / 2048)}, {t(1)}")
    p(f"v_lshrrev_b32 {t(2)}, 5, v0\nv_lshlrev_b32 {t(2)}, 8, {t(2)}\nv_add_u32 {t(2)}, s{sS2}, {t(2)}\nv_cvt_f32_u32 {t(2)}, {t(2)}")
    p(f"v_and_b32 {t(3)}, 1, v0\nv_mul_u32_u24 {t(3)}, 0x8000, {t(3)}\nv_lshl_or_b32 {t(3)}, {t(3)}, 16, {t(3)}")
    for j in range(8):
        s1 = 8 * (j >> 2) + (j & 3)
        p(f"v_add_f32 {t(4)}, {hx(64.0 * s1)}, {t(2)}\nv_mul_f32 {t(4)}, {t(4)}, {t(1)}\nv_fract_f32 {t(4)}, {t(4)}")
        p(f"v_cos_f32 {t(8 + j)}, {t(4)}\nv_sin_f32 {t(16 + j)}, {t(4)}")
    for j in range(4):
        p(f"v_cvt_pk_bf16_f32 v{vC1 + j}, {t(8 + 2 * j)}, {t(9 + 2 * j)}")
        p(f"v_cvt_pk_bf16_f32 v{vC1 + 8 + j}, {t(16 + 2 * j)}, {t(17 + 2 * j)}")
    for j in range(4):
        p(f"v_xor_b32 v{vC1 + 4 + j}, {t(3)}, v{vC1 + j}")
        p(f"v_xor_b32 v{vC1 + 12 + j}, {t(3)}, v{vC1 + 8 + j}")
    stamp(p, "pro")

    vIT = vACC + 48
    p(f"s_mul_hi_u32 s5, s3, {(2**32 + 39) // 40}\ns_mul_i32 s6, s5, 40\ns_sub_u32 s6, s3, s6")
    p(f"v_and_b32 {t(0)}, 15, v0\ns_lshl_b32 s6, s6, 4\nv_add_u32 {t(0)}, s6, {t(0)}")
    p(f"v_lshrrev_b32 {t(1)}, 4, v0\nv_lshlrev_b32 {t(1)}, 2, {t(1)}\ns_lshl_b32 s5, s5, 4\nv_add_u32 {t(1)}, s5, {t(1)}")
    a1 = 1.0 / (S * D)
    p(f"v_mov_b32 {t(2)}, {hx(2 * a1)}\nv_mov_b32 {t(3)}, {hx(a1)}")
    for r in range(4):
        p(f"v_add_u32 {t(4)}, {r}, {t(1)}")
        p(f"v_mul_u32_u24 {t(9)}, {t(4)}, {t(0)}\nv_cvt_f32_u32 {t(9)}, {t(9)}\nv_mul_f32 {t(9)}, {hx(1.0 / 640)}, {t(9)}")
        p(f"v_cmp_eq_u32 vcc, 0, {t(4)}\nv_fract_f32 {t(9)}, {t(9)}\nv_cos_f32 {t(6)}, {t(9)}\nv_cndmask_b32 {t(8)}, {t(2)}, {t(3)}, vcc")
        p(f"v_cmp_eq_u32 vcc, 320, {t(4)}\nv_sin_f32 {t(7)}, {t(9)}\ns_nop 0\nv_cndmask_b32 {t(8)}, {t(8)}, {t(3)}, vcc")
        p(f"v_cmp_ge_u32 vcc, 320, {t(4)}\nv_cndmask_b32 {t(8)}, 0, {t(8)}, vcc")
        p(f"v_mul_f32 {t(6)}, {t(6)}, {t(8)}\nv_mul_f32 {t(7)}, {t(7)}, {t(8)}")
        p(f"v_cvt_pk_bf16_f32 v{vIT + r}, {t(6)}, -{t(7)}")
    x_dma(2)
    stamp(p, "pro")
    stamp(p)
    p("s_cmp_lg_u32 s2, 0\ns_cbranch_scc1 L_noclr2")
    p.opt_begin()
    p.wait_tag('clr')
    p.opt_end()
    p("L_noclr2:")
    p.wait_lds()
    p("s_barrier")
    p(f"s_cmp_lg_u32 s3, 0\ns_cbranch_scc1 L_nogo")
    p.opt_begin()
    p(f"v_mov_b32 {t(0)}, 0\nbuffer_store_dword v{vONE}, {t(0)}, {sr(SDBG)}, 0 offen sc1")
    p.opt_end()
    p("L_nogo:")

    npoll = [0]

    def poll_issue(dst, vaddr, srd, soff, x4=False):
        op, d = ("buffer_load_dwordx4", vr(dst)) if x4 else ("buffer_load_dword", f"v{dst}")
        p(f"{op} {d}, {vaddr}, {sr(srd)}, {soff} offen sc1")

    def poll_check(dst, vaddr, srd, soff, thr, x4=False):
        n = npoll[0]
        npoll[0] += 1
        inner = p._opt is not None

        def test():
            if x4:
                p(f"v_min3_u32 v{dst}, v{dst}, v{dst + 1}, v{dst + 2}\nv_min_u32 v{dst}, v{dst}, v{dst + 3}")
            p(f"v_cmp_le_u32 vcc, {thr}, v{dst}\ns_nop 0\ns_cmp_eq_u64 vcc, exec")

        test()
        p(f"s_cbranch_scc1 L_ok{n}")
        if not inner:
            p.opt_begin()
        saved = len(p.ins)
        p(f"s_mov_b32 s{sSPIN}, {SPIN_MAX}")
        p(f"L_spin{n}:")
        p("s_sleep 2")
        poll_issue(dst, vaddr, srd, soff, x4)
        p("s_waitcnt vmcnt(0)")
        test()
        p(f"s_cbranch_scc1 L_ok{n}")
        p(f"s_sub_u32 s{sSPIN}, s{sSPIN}, 1\ns_cmp_lg_u32 s{sSPIN}, 0\ns_cbranch_scc1 L_spin{n}")
        if inner:
            p._nopt += 1
            for i in p.ins[saved:]:
                i.opt = p._nopt
        else:
            p.opt_end()
        p(f"L_ok{n}:")

    A1, A2 = vACC, vACC + 16

    def x_reads_v(sl):
        for tt in range(4):
            p(f"ds_read_b128 {vr(vXT + 16 * (sl & 1) + 4 * tt)}, v{vXR + tt} offset:{(sl % 3) * 4096}")

    def x_reads_a(sl):
        for tt in range(4):
            p(f"ds_read_b128 {ar(16 * sl + 4 * tt)}, v{vXR + tt} offset:{(sl % 3) * 4096}")

    def tab_read(k, base):
        p(f"ds_read_b128 {vr(vTB + 4 * (k % 4))}, v{vL16} offset:{base + (k % 20) * 1024}")

    def wd_dma():
        p(f"v_lshrrev_b32 {t(0)}, 4, v0\ns_lshl_b32 s5, s{sW}, 3\ns_lshl_b32 s6, s{sT32}, 5\ns_add_u32 s5, s5, s6")
        p(f"v_add_u32 {t(0)}, s5, {t(0)}\nv_mul_u32_u24 {t(0)}, 1280, {t(0)}")
        p(f"v_and_b32 {t(1)}, 15, v0\nv_lshl_add_u32 {t(0)}, {t(1)}, 4, {t(0)}")
        p(f"s_lshl_b32 s5, s{sC5}, 8\ns_add_u32 s6, s5, {4 * 1280}\ns_lshl_b32 s7, s{sW}, 11")
        p(f"s_add_u32 m0, s7, {MISC}")
        p(f"buffer_load_dwordx4 {t(0)}, {sr(SD)}, s5 offen lds", tag='wd')
        p(f"s_add_u32 m0, s7, {MISC + 1024}")
        p(f"buffer_load_dwordx4 {t(0)}, {sr(SD)}, s6 offen lds", tag='wd')

    p.wait_tag(('x', 0))
    x_reads_v(0)
    x_reads_a(0)
    for tt in range(4):
        tab_read(tt, TAB)
    for sl in range(10):
        xb = vXT + 16 * (sl & 1)
        for j in range(16):
            p(f"v_dot2c_f32_bf16 v{vSUM}, s{sONE}, v{xb + j}")
            p(f"v_dot2c_f32_bf16 v{vSQ}, v{xb + j}, v{xb + j}")
        p.wait_lds()

        def mf(tt):
            k = 4 * sl + tt
            acc = A1 if k < 20 else A2
            c = "0" if k in (0, 20) else vr(acc, 16)
            p(f"v_mfma_f32_32x32x16_bf16 {vr(acc, 16)}, {vr(xb + 4 * tt)}, {vr(vTB + 4 * tt)}, {c}")

        mf(0)
        if sl + 3 < 10:
            x_dma(sl + 3, (0, 1))
        mf(1)
        if sl + 3 < 10:
            x_dma(sl + 3, (2, 3), head=False)
        if sl + 1 < 10:
            p.wait_tag(('x', sl + 1))
        mf(2)
        if sl + 1 < 10:
            x_reads_v(sl + 1)
        mf(3)
        if sl + 1 < 10:
            x_reads_a(sl + 1)
            for tt in range(4):
                tab_read(4 * sl + 4 + tt, TAB)
        if sl == 6:
            wd_dma()
            if OPT['pf_w']:
                touch(SG, 15, t(6))
                touch(SU, 15, t(7))
        if sl == 7:
            ring_dma(0)
            ring_dma(1)
        if sl == 8:
            ring_dma(2)
            p(f"v_mov_b32 {t(30)}, 0")
            poll_issue(vT + 31, t(30), SDBG, 0)
        if sl == 9:
            ring_dma(3)
    stamp(p)

    stamp(p, "p1")
    p(f"v_mov_b32 {t(0)}, v{vSUM}\nv_mov_b32 {t(1)}, v{vSQ}")
    p(f"v_permlane32_swap_b32 {t(0)}, v{vSUM}\nv_permlane32_swap_b32 {t(1)}, v{vSQ}")
    p(f"v_add_f32 {t(0)}, {t(0)}, v{vSUM}\nv_add_f32 {t(1)}, {t(1)}, v{vSQ}")
    p(f"v_mul_f32 {t(0)}, {hx(1.0 / 640)}, {t(0)}\nv_mul_f32 {t(1)}, {hx(1.0 / 640)}, {t(1)}")
    p(f"v_fma_f32 {t(1)}, -{t(0)}, {t(0)}, {t(1)}\nv_max_f32 {t(1)}, 0, {t(1)}")
    p(f"v_cvt_pk_bf16_f32 {t(2)}, {t(0)}, {t(1)}")
    p(f"v_lshlrev_b32 {t(0)}, 16, {t(2)}\nv_and_b32 {t(1)}, 0xffff0000, {t(2)}")
    p(f"v_add_f32 {t(1)}, {hx(1e-5)}, {t(1)}\nv_cvt_pk_bf16_f32 {t(1)}, {t(1)}, {t(1)}\nv_and_b32 {t(1)}, 0xffff0000, {t(1)}")
    p(f"v_sqrt_f32 {t(1)}, {t(1)}\nv_and_b32 {t(2)}, 31, v0\nv_cvt_pk_bf16_f32 {t(1)}, {t(1)}, {t(1)}\nv_and_b32 {t(1)}, 0xffff0000, {t(1)}")
    p(f"v_rcp_f32 {t(1)}, {t(1)}")
    p(f"v_lshlrev_b32 {t(2)}, 2, {t(2)}\ns_add_u32 s5, s{sM0X}, 12032\nv_add_u32 {t(2)}, s5, {t(2)}")
    p(f"ds_write2_b32 {t(2)}, {t(1)}, {t(0)} offset0:0 offset1:32")
    p(f"v_sub_f32 v{vNM}, 0, {t(0)}\nv_mul_f32 v{vR2}, {t(1)}, {t(1)}")
    p.wait_lds()
    for a in range(4):
        p(f"ds_read_b128 {vr(vRR + 4 * a)}, v{vSTA} offset:{32 * a}")
    p(f"s_lshl_b32 s5, s3, 10\ns_add_u32 s5, s5, {WS_IT}\ns_cmp_lt_u32 s3, 840\ns_cselect_b32 s5, s5, {OOB}")
    p(f"buffer_store_dwordx4 {vr(vIT)}, v{vL16}, {sr(SWS)}, s5 offen sc1", tag='p0')

    def dft_front(sT, ex, first):
        for i in range(0, 16, 2):
            p(f"v_pk_fma_f32 {vr(A1 + i, 2)}, {vr(A2 + i, 2)}, {vr(vSGN, 2)}, {vr(A1 + i, 2)} op_sel_hi:[1,0,1]")
        if first:
            ring_dma(4)
            p(f"s_cmp_lg_u32 s{sT}, 0\ns_cbranch_scc1 L_nodc")
            p.opt_begin()
            for a in range(4):
                p(f"ds_read_b128 {vr(vT + 4 * a)}, v{vSTA} offset:{128 + 32 * a}")
            for i in range(16):
                p(f"v_fmac_f32 v{A1 + i}, v{vDC}, {t(i)}")
            p.opt_end()
            p("L_nodc:")
        for i in range(0, 16, 2):
            p(f"v_pk_mul_f32 {vr(A1 + i, 2)}, {vr(A1 + i, 2)}, {vr(vRR + i, 2)}")
        for j in range(8):
            p(f"v_cvt_pk_bf16_f32 {t(j)}, v{A1 + 2 * j}, v{A1 + 2 * j + 1}")
        P_, Q_ = vACC + 32, vACC + 48
        p(f"v_mfma_f32_32x32x16_bf16 {vr(P_, 16)}, {vr(vC1)}, {vr(vT)}, 0")
        p(f"v_mfma_f32_32x32x16_bf16 {vr(P_, 16)}, {vr(vC1 + 4)}, {vr(vT + 4)}, {vr(P_, 16)}")
        p(f"v_mfma_f32_32x32x16_bf16 {vr(Q_, 16)}, {vr(vC1 + 8)}, {vr(vT)}, 0")
        p(f"v_mfma_f32_32x32x16_bf16 {vr(Q_, 16)}, {vr(vC1 + 12)}, {vr(vT + 4)}, {vr(Q_, 16)}")
        if first:
            ring_dma(5)
        for q in range(8):
            p(f"v_permlane16_swap_b32 v{P_ + 2 * q}, v{P_ + 2 * q + 1}")
        for q in range(8):
            p(f"v_permlane16_swap_b32 v{Q_ + 2 * q}, v{Q_ + 2 * q + 1}")
        for q in range(8):
            p(f"v_add_f32 v{P_ + 2 * q}, v{P_ + 2 * q}, v{Q_ + 2 * q + 1}")
            p(f"v_sub_f32 v{P_ + 2 * q + 1}, v{P_ + 2 * q + 1}, v{Q_ + 2 * q}")
            p(f"v_cvt_pk_bf16_f32 {t(8 + q)}, v{P_ + 2 * q}, v{P_ + 2 * q + 1}")
            p(f"ds_write_b32 v{vEXW}, {t(8 + q)} offset:{ex - EX0 + (8 * (q >> 1) + 2 * (q & 1)) * 256}")

    def dft_back(sT, ex):
        p(f"s_lshl_b32 s5, s{sW}, 11\ns_add_u32 s5, s5, {ex}\nv_add_u32 {t(16)}, s5, v{vL16}")
        for e in range(2):
            p(f"ds_read_b128 {vr(vT + 20 + 4 * e)}, {t(16)} offset:{e * 1024}")
        p(f"s_lshl_b32 s5, s{sT}, 4\ns_add_u32 s5, s5, s{sRB}\ns_lshl_b32 s5, s5, 8\ns_add_u32 s5, s5, {WS_T}")
        p(f"s_add_u32 s6, s5, {4 * 86016}")
        p(f"buffer_store_dwordx4 {vr(vT + 20)}, v{vTST}, {sr(SWS)}, s5 offen sc1", tag='p0')
        p(f"buffer_store_dwordx4 {vr(vT + 24)}, v{vTST}, {sr(SWS)}, s6 offen sc1", tag='p0')

    stamp(p, "p1")
    dft_front(sT0, EX0, True)
    stamp(p, "p1")
    poll_check(vT + 31, t(30), SDBG, 0, 1)
    p.wait_tag('wd')
    stamp(p, "p1")
    p.wait_lds()
    p("s_barrier")
    dft_back(sT0, EX0)
    p(f"v_lshrrev_b32 {t(0)}, 5, v0\nv_lshlrev_b32 {t(0)}, 4, {t(0)}\nv_bfe_u32 {t(1)}, v0, 4, 1\nv_lshl_add_u32 {t(0)}, {t(1)}, 2, {t(0)}")
    p(f"v_bfe_u32 {t(1)}, v0, 2, 2\nv_add_u32 {t(0)}, {t(0)}, {t(1)}\nv_lshlrev_b32 {t(0)}, 8, {t(0)}")
    p(f"v_and_b32 {t(1)}, 3, v0\nv_lshl_add_u32 {t(0)}, {t(1)}, 3, {t(0)}\ns_lshl_b32 s5, s{sW}, 6\ns_add_u32 s5, s5, {MISC}\nv_add_u32 {t(0)}, s5, {t(0)}")
    for jt in range(2):
        for q in range(2):
            p(f"ds_read_b64_tr_b16 {vr(vT + 4 + 4 * jt + 2 * q, 2)}, {t(0)} offset:{jt * 32 + q * 2048}")
    p(f"s_mul_i32 s5, s{sT32}, 40\ns_lshl_b32 s6, s{sC5}, 3\ns_add_u32 s5, s5, s6\ns_lshl_b32 s6, s{sW}, 1\ns_add_u32 s5, s5, s6")
    p(f"s_lshl_b32 s5, s5, 10\ns_add_u32 s5, s5, {WS_WD}\ns_cmp_lt_u32 s2, 240\ns_cselect_b32 s5, s5, {OOB}")
    for jt in range(2):
        p(f"buffer_store_dwordx4 {vr(vT + 4 + 4 * jt)}, v{vL16}, {sr(SWS)}, s5 offen offset:{jt * 1024} sc1", tag='p0')
    stamp(p, "p1")

    p(f"s_cmp_eq_u32 s{sT1}, 0\ns_cbranch_scc1 L_nou1")
    p.opt_begin()
    for k in range(3):
        tab_read(k, TAB + 20480)
    for k in range(40):
        acc = A1 if k < 20 else A2
        c = "0" if k in (0, 20) else vr(acc, 16)
        p(f"v_mfma_f32_32x32x16_bf16 {vr(acc, 16)}, {ar(4 * k)}, {vr(vTB + 4 * (k % 4))}, {c}")
        if k + 3 < 40:
            tab_read(k + 3, TAB + 20480)
    dft_front(sT1, EX1, False)
    p.wait_lds()
    p("s_barrier")
    dft_back(sT1, EX1)
    p.opt_end()
    p("L_nou1:")
    stamp(p)

    def readsA(k, tile):
        st, tt = k >> 1, k & 1
        fr = vFR + 16 * (k & 1) + 4 * tile
        for q in range(2):
            p(f"ds_read_b64_tr_b16 {vr(fr + 2 * q, 2)}, v{vRA} offset:{(st % 8) * 8192 + tt * 4096 + tile * 512 + q * 256}")

    def readsCA(k):
        st, tt = k >> 1, k & 1
        for q in range(2):
            p(f"ds_read_b64_tr_b16 {vr(vCF + 4 * (k & 1) + 2 * q, 2)}, v{vCA} offset:{(st % 8) * 8192 + tt * 4096 + q * 256}")

    p.wait_tag(('w', 0))
    p.wait_lds()
    p("s_barrier")
    for tile in range(4):
        readsA(0, tile)
    readsCA(0)
    ring_dma(6)
    for k in range(40):
        nxt = k + 1 < 40
        j = (k + 1) >> 1

        def mfA(tile):
            acc = vACC + 16 * tile
            c = "0" if k == 0 else vr(acc, 16)
            p(f"v_mfma_f32_32x32x16_bf16 {vr(acc, 16)}, {vr(vFR + 16 * (k & 1) + 4 * tile)}, {ar(4 * k)}, {c}")

        mfA(0)
        if k & 1 and nxt:
            if j == 4:
                p.wait_tag(('w', j), 'p0')
            else:
                p.wait_tag(('w', j))
            p("s_barrier")
        if nxt:
            readsA(k + 1, 0)
        mfA(1)
        piece = (ring_piece(j + 6, 0)[1:] if nxt else []) if k & 1 else (ring_piece(j + 6, 1) if k > 0 else [])
        emit(piece[:-1])
        if nxt:
            readsA(k + 1, 1)
        emit(piece[-1:])
        mfA(2)
        if nxt:
            readsA(k + 1, 2)
            readsCA(k + 1)
        mfA(3)
        if nxt:
            readsA(k + 1, 3)
        if not k & 1 and k < 38:
            emit(ring_piece(j + 7, 0)[:1])
        if k == 7:
            p(f"buffer_store_dword v{vONE}, v{vFLA}, {sr(SWS)}, 0 offen sc1")
        if k == 12 and OPT['pf_f']:
            touch(SWR, 11, t(6))
        if k == 14 and OPT['pf_f']:
            touch(SWI, 11, t(7))
        c = "0" if k == 0 else vr(vCS)
        p(f"v_mfma_f32_16x16x32_bf16 {vr(vCS)}, {vr(vCF + 4 * (k & 1))}, {vr(vIND)}, {c}")
    stamp(p)

    stamp(p, "p1")
    vCSW, vCSR = vXG, vXG + 1
    p(f"v_and_b32 {t(0)}, 15, v0\nv_lshrrev_b32 {t(1)}, 4, v0\nv_lshlrev_b32 {t(1)}, 4, {t(1)}\nv_lshl_add_u32 {t(1)}, {t(0)}, 6, {t(1)}")
    p(f"s_lshl_b32 s5, s{sW}, 7\nv_add_u32 {t(1)}, s5, {t(1)}\nv_add_u32 {t(2)}, 2048, v{vL16}")
    p(f"v_cmp_gt_u32 vcc, 2, {t(0)}\nv_lshrrev_b32 {t(3)}, 5, v0\nv_lshlrev_b32 {t(3)}, 4, {t(3)}\nv_cndmask_b32 {t(1)}, {t(2)}, {t(1)}, vcc")
    p(f"v_add_u32 v{vCSW}, {CSX}, {t(1)}\nv_add_u32 v{vCSR}, {CSX}, {t(3)}")

    def glu_epilogue(G, U, csg, csu, soff, tag, two=False):
        n = 0
        for acc, cs in ((G, csg), (U, csu)):
            for part in range(2 if two else 1):
                b = vXT + 16 * (n & 1) if not two else vFR + 16 * (n & 1)
                n += 1
                for a in range(4):
                    p(f"ds_read_b128 {vr(b + 4 * a)}, v{vCSR} offset:{cs + part * 256 + 32 * a}")
                for i in range(0, 16, 2):
                    p(f"v_pk_fma_f32 {vr(acc + i, 2)}, {vr(b + i, 2)}, {vr(vNM, 2)}, {vr(acc + i, 2)} op_sel_hi:[1,0,1]")
        for i in range(0, 16, 2):
            p(f"v_max_f32 v{G + i}, 0, v{G + i}\nv_max_f32 v{G + i + 1}, 0, v{G + i + 1}")
            p(f"v_pk_mul_f32 {vr(U + i, 2)}, {vr(U + i, 2)}, {vr(vR2, 2)} op_sel_hi:[1,0]")
        for i in range(0, 16, 2):
            p(f"v_pk_mul_f32 {vr(G + i, 2)}, {vr(G + i, 2)}, {vr(U + i, 2)}")
        for j in range(8):
            p(f"v_cvt_pk_bf16_f32 v{U + j}, v{G + 2 * j}, v{G + 2 * j + 1}")
        for u in range(2):
            p(f"buffer_store_dwordx4 {vr(U + 4 * u)}, v{vHST}, {sr(SWS)}, {soff} offen offset:{u * 512} sc1", tag=tag)

    def readsB(k, mat):
        st, tt = 20 + (k >> 2), k & 3
        fr = vFR + 8 * (k & 1) + 4 * mat
        for q in range(2):
            p(f"ds_read_b64_tr_b16 {vr(fr + 2 * q, 2)}, v{vRB} offset:{(st % 8) * 8192 + tt * 2048 + mat * 1024 + q * 256}")

    def readsCB(k2):
        st, tt = 20 + (k2 >> 1), (k2 & 1) * 2
        for q in range(2):
            p(f"ds_read_b64_tr_b16 {vr(vCF + 4 * (k2 & 1) + 2 * q, 2)}, v{vCB_} offset:{(st % 8) * 8192 + tt * 2048 + q * 256}")

    p(f"ds_write_b128 v{vCSW}, {vr(vCS)}")
    p.wait_tag(('w', 20))
    p.wait_lds()
    p("s_barrier")
    readsB(0, 0)
    readsB(0, 1)
    readsCB(0)
    ring_dma(26)
    emit(ring_piece(27, 0))
    glu_epilogue(vACC, vACC + 32, 0, 256, f"s{sHA}", 'hA')
    emit(ring_piece(27, 1))
    p(f"s_add_u32 s{sHA}, s{sHA}, 2048")
    glu_epilogue(vACC + 16, vACC + 48, 128, 384, f"s{sHA}", 'hA')
    stamp(p, "p1")

    vPA, vPH = vXG + 2, vXG + 3
    BG, BU = vACC, vACC + 16
    for k in range(40):
        nxt = k + 1 < 40
        j = 20 + ((k + 1) >> 2)

        def mfB(mat):
            acc = vACC + 16 * mat
            c = "0" if k == 0 else vr(acc, 16)
            p(f"v_mfma_f32_32x32x16_bf16 {vr(acc, 16)}, {vr(vFR + 8 * (k & 1) + 4 * mat)}, {ar(4 * k)}, {c}")

        mfB(0)
        if (k & 3) == 3 and nxt:
            p.wait_tag(('w', j))
            p("s_barrier")
        piece = ring_piece(26 + (k >> 2), k & 1) if (k & 3) in (0, 1) and k >= 8 else []
        emit(piece[:-1])
        if nxt:
            readsB(k + 1, 0)
        emit(piece[-1:])
        mfB(1)
        if nxt:
            readsB(k + 1, 1)
        if k == 10:
            p.wait_tag('hA')
            p(f"buffer_store_dword v{vONE}, v{vFLH}, {sr(SWS)}, 0 offen sc1")
        if k & 1:
            k2 = k >> 1
            c = "0" if k2 == 0 else vr(vCS)
            p(f"v_mfma_f32_16x16x32_bf16 {vr(vCS)}, {vr(vCF + 4 * (k2 & 1))}, {vr(vIND)}, {c}")
            if k2 + 1 < 20:
                readsCB(k2 + 1)
    stamp(p)
    stamp(p, "p2")
    vFA4 = vACC + 32
    vFH1 = vACC + 36
    p(f"v_and_b32 {t(0)}, 3, v0\nv_bfe_u32 {t(1)}, v0, 2, 1\nv_lshl_add_u32 {t(0)}, {t(1)}, 4, {t(0)}")
    p(f"s_lshl_b32 s5, s{sPR}, 5\ns_lshl_b32 s6, s{sW}, 2\ns_add_u32 s5, s5, s6\nv_add_u32 {t(0)}, s5, {t(0)}\nv_lshlrev_b32 {t(0)}, 2, {t(0)}")
    p(f"v_add_u32 v{vPH}, {FL_H}, {t(0)}\nv_add_u32 v{vPA}, {FL_A}, v{vL16}")
    poll_issue(vFA4, f"v{vPA}", SWS, 0, x4=True)
    poll_issue(vFH1, f"v{vPH}", SWS, 0)
    p(f"ds_write_b128 v{vCSW}, {vr(vCS)} offset:512")

    vIN, vIN2, vWR, vWI, vX, vY = 60, 108, 76, 92, 124, 156
    vWA = vXR
    p(f"s_cmp_ge_u32 s{sJOB}, 168\ns_cbranch_scc1 L_now")
    p.opt_begin()
    p(f"v_lshrrev_b32 {t(0)}, 4, v0\nv_lshlrev_b32 {t(1)}, 7, {t(0)}\nv_add_u32 {t(1)}, s{sK1}, {t(1)}\nv_mul_u32_u24 {t(1)}, 642, {t(1)}")
    p(f"v_and_b32 {t(2)}, 15, v0\ns_lshl_b32 s5, s{sT2}, 4\nv_add_u32 {t(3)}, s5, {t(2)}\nv_lshl_add_u32 v{vWA}, {t(3)}, 1, {t(1)}")
    for k in range(4):
        for r in range(4):
            p(f"s_mov_b32 s5, {k * 328704 + r * 20544}")
            p(f"buffer_load_ushort v{vWR + 4 * k + r}, v{vWA}, {sr(SWR)}, s5 offen")
            p(f"buffer_load_ushort v{vWI + 4 * k + r}, v{vWA}, {sr(SWI)}, s5 offen")
    p.opt_end()
    p("L_now:")
    stamp(p, "p2")
    p.wait_lds()
    p("s_barrier")
    glu_epilogue(BG, BU, 512, 512 + 128, f"s{sHB}", 'hB', two=True)

    sH0, sH1, sWD, sU0, sU1, sIT = 61, 62, 63, 64, 65, 66
    sa, sb0, sb1, sa4 = 67, 68, 69, 70
    p(f"s_mul_i32 s5, s{sW}, 12\ns_mul_i32 s6, s{sPR}, 96\ns_add_u32 s6, s6, s5\ns_lshl_b32 s6, s6, 11\ns_add_u32 s{sH0}, s6, {WS_H}")
    p(f"s_mul_i32 s5, s5, 40\ns_mul_i32 s7, s{sNB}, 5\ns_add_u32 s5, s5, s7\ns_lshl_b32 s5, s5, 10\ns_add_u32 s{sWD}, s5, {WS_WD}")
    p(f"s_mul_i32 s5, s{sW}, 5\ns_add_u32 s5, s5, 1\ns_mul_i32 s6, s{sPR}, 42\ns_add_u32 s6, s6, s5\ns_lshl_b32 s6, s6, 11\ns_add_u32 s{sU0}, s6, {WS_U}")
    p(f"s_mul_i32 s5, s5, 40\ns_add_u32 s5, s5, s7\ns_lshl_b32 s5, s5, 10\ns_add_u32 s{sIT}, s5, {WS_IT}")

    stage = [('a', 80), ('a', 116), ('v', 188), ('a', 160), ('a', 196)]
    ORDER = [0, 1, 4, 5, 6, 7, 10, 11, 2, 3, 8, 9]
    NG, NU = 12, 18

    def st_of(u):
        return stage[u % 5]

    def fr(u, j):
        k, b = st_of(u)
        return f"{k}[{b + 4 * j}:{b + 4 * j + 3}]"

    def loads(u):
        if u < NG:
            a, b, o, dl = sWD, sH0, ORDER[u], 48 * 2048
        else:
            a, b, o, dl = sIT, sU0, (u - NG if u < 17 else -1), 21 * 2048
        L = [(f"s_add_u32 s{sb0}, s{b}, {(o * 2048) & 0xffffffff}", None), (f"s_add_u32 s{sb1}, s{sb0}, {dl}", None),
             (f"s_add_u32 s{sa}, s{a}, {(o * 40960) & 0xffffffff}", None), (f"s_add_u32 s{sa4}, s{sa}, 4096", None)]
        for j in range(2):
            L.append((f"buffer_load_dwordx4 {fr(u, 5 + j)}, v{vL16}, {sr(SWS)}, s{sb0} offen offset:{j * 1024} sc1", None))
        for j in range(2):
            L.append((f"buffer_load_dwordx4 {fr(u, 7 + j)}, v{vL16}, {sr(SWS)}, s{sb1} offen offset:{j * 1024} sc1", None))
        for j in range(4):
            L.append((f"buffer_load_dwordx4 {fr(u, j)}, v{vL16}, {sr(SWS)}, s{sa} offen offset:{j * 1024} sc1", None))
        L.append((f"buffer_load_dwordx4 {fr(u, 4)}, v{vL16}, {sr(SWS)}, s{sa4} offen sc1", None))
        return L

    def weave(main, fill, start=0, step=1):
        fill = list(fill)
        for n, m in enumerate(main):
            p(m)
            if n >= start and (n - start) % step == 0:
                while fill and fill[0][0].startswith('s_'):
                    emit([fill.pop(0)])
                if fill:
                    emit([fill.pop(0)])
        emit(fill)

    stamp(p, "p2")
    poll_check(vFA4, f"v{vPA}", SWS, 0, 1, x4=True)
    poll_check(vFH1, f"v{vPH}", SWS, 0, 1)
    stamp(p, "p2")
    p(f"v_mov_b32 {t(31)}, 2")

    aP2 = 160
    vFLB = vXR + 1
    p(f"s_cmp_ge_u32 s{sJOB}, 168\ns_cbranch_scc1 L_nop2")
    r2 = p.opt_begin()
    p(f"s_mul_i32 s5, s{sK1}, 21\ns_add_u32 s5, s5, s{sT2}\ns_lshl_b32 s5, s5, 12\ns_add_u32 s5, s5, {WS_T}")
    for k in range(4):
        p(f"buffer_load_dwordx4 {vr(vIN + 4 * k)}, v{vL16}, {sr(SWS)}, s5 offen offset:{k * 1024} sc1")
    emit(loads(0))
    for i in range(16):
        p(f"ds_read_b128 {ar(aP2 + 4 * i)}, v{vL16} offset:{P2C + i * 1024}")
    vEX2 = vXR + 2
    p(f"v_lshrrev_b32 {t(0)}, 4, v0\nv_and_b32 {t(2)}, 15, v0\nv_lshlrev_b32 {t(1)}, 10, {t(0)}\nv_lshl_add_u32 {t(1)}, {t(2)}, 4, {t(1)}")
    p(f"s_lshl_b32 s5, s{sW}, 2\ns_add_u32 s5, s5, {P2X}\nv_add_u32 v{vEX2}, s5, {t(1)}")
    p(f"s_mul_i32 s5, s{sW}, 168\ns_lshl_b32 s6, s{sT2}, 3\ns_add_u32 s5, s5, s6\ns_add_u32 s5, s5, s{sQ}\ns_lshl_b32 s5, s5, 2\ns_add_u32 s5, s5, {FL_B}")
    p(f"v_mov_b32 {t(3)}, s5\nv_cmp_eq_u32 vcc, 0, v0\ns_nop 1\nv_cndmask_b32 v{vFLB}, v{vPOL}, {t(3)}, vcc")
    for i in range(32):
        p(f"v_lshlrev_b32 v{vWR + i}, 16, v{vWR + i}")
    for i in range(16):
        p(f"v_alignbit_b32 v{vIN2 + i}, v{vIN + i}, v{vIN + i}, 16")
        p(f"v_xor_b32 v{vIN2 + i}, 0x80000000, v{vIN2 + i}")
    p(f"buffer_store_dword {t(31)}, v{vFLH}, {sr(SWS)}, 0 offen sc1")

    def dft64(bre, bim):
        L = []
        for k in range(4):
            for mt in range(4):
                for part, b in ((0, bre), (1, bim)):
                    d = vX + 16 * part + 4 * mt
                    c = "0" if k == 0 else vr(d)
                    L.append(f"v_mfma_f32_16x16x32_bf16 {vr(d)}, {ar(aP2 + 16 * mt + 4 * k)}, {vr(b + 4 * k)}, {c}")
        return L

    stamp(p, "p2")
    weave(dft64(vIN, vIN2), loads(1), 0, 3)
    for i in range(16):
        xr, xi, wr_, wi_ = f"v{vX + i}", f"v{vX + 16 + i}", f"v{vWR + i}", f"v{vWI + i}"
        a, b = t(2 * (i % 4)), t(2 * (i % 4) + 1)
        p(f"v_mul_f32 {a}, {xr}, {wr_}\nv_mul_f32 {b}, {xr}, {wi_}")
        p(f"v_fma_f32 {a}, -{xi}, {wi_}, {a}\nv_fmac_f32 {b}, {xi}, {wr_}")
        p(f"v_cvt_pk_bf16_f32 v{vY + i}, {a}, -{b}\nv_cvt_pk_bf16_f32 v{vY + 16 + i}, {b}, {a}")
    weave(dft64(vY, vY + 16), [], 0, 3)
    stamp(p, "p2")
    for i in range(16):
        p(f"v_cvt_pk_bf16_f32 {t(i)}, v{vX + i}, v{vX + 16 + i}")
        p(f"ds_write_b32 v{vEX2}, {t(i)} offset:{(16 * (i >> 2) + (i & 3)) * 256}")
    p(f"s_lshl_b32 s5, s{sW}, 12\ns_add_u32 s5, s5, {P2X}\nv_add_u32 v{vEX2 + 1}, s5, v{vL16}")
    p(f"v_lshrrev_b32 {t(16)}, 4, v0\ns_lshl_b32 s5, s{sW}, 4\nv_add_u32 {t(16)}, s5, {t(16)}\nv_mul_u32_u24 {t(16)}, {21 * 2048}, {t(16)}")
    p(f"v_and_b32 {t(17)}, 15, v0\nv_lshl_add_u32 {t(16)}, {t(17)}, 4, {t(16)}")
    p(f"s_lshl_b32 s5, s{sT2}, 3\ns_add_u32 s5, s5, s{sQ}\ns_lshl_b32 s5, s5, 8\ns_add_u32 s5, s5, {WS_U}")
    p.wait_lds()
    p("s_barrier")
    for e in range(4):
        p(f"ds_read_b128 {vr(vIN + 4 * e)}, v{vEX2 + 1} offset:{e * 1024}")
    for e in range(4):
        p(f"buffer_store_dwordx4 {vr(vIN + 4 * e)}, {t(16)}, {sr(SWS)}, s5 offen sc1", tag='U')
        if e < 3:
            p(f"s_add_u32 s5, s5, {4 * 21 * 2048}")
    p("s_branch L_p3")
    p.opt_end()
    p("L_nop2:")
    p.opt_begin(excl=r2)
    p(f"v_mov_b32 v{vFLB}, {OOB}")
    emit(loads(0))
    p.wait_tag('hB')
    p(f"buffer_store_dword {t(31)}, v{vFLH}, {sr(SWS)}, 0 offen sc1")
    emit(loads(1))
    p.opt_end()
    p("L_p3:")
    stamp(p, "p2")
    stamp(p, "p3")
    stamp(p)

    vZ, vZP, vK = 124, 156, 60
    vFB1, vPB = vT + 29, vT + 30
    cg = []
    cg += [f"v_and_b32 {t(0)}, 15, v0", f"v_lshlrev_b32 {t(0)}, 6, {t(0)}", f"s_lshl_b32 s5, s{sPR}, 1", f"v_add_u32 {t(0)}, s5, {t(0)}",
           f"v_cvt_f32_u32 {t(0)}, {t(0)}", f"v_mul_f32 {t(0)}, {hx(1.0 / 2048)}, {t(0)}", f"v_add_f32 {t(1)}, {hx(1.0 / 2048)}, {t(0)}",
           f"v_lshrrev_b32 {t(2)}, 4, v0", f"v_lshlrev_b32 {t(2)}, 2, {t(2)}", f"v_cvt_f32_u32 {t(2)}, {t(2)}"]
    for e in range(2):
        for k in range(2):
            for r in range(4):
                cg += [f"v_add_f32 {t(3)}, {hx(16.0 * k + r)}, {t(2)}", f"v_mul_f32 {t(3)}, {t(3)}, {t(e)}", f"v_fract_f32 {t(3)}, {t(3)}",
                       f"v_cos_f32 {t(4)}, {t(3)}", f"v_sin_f32 {t(5)}, {t(3)}"]
                for hf in range(2):
                    n = hf and (r & 1)
                    c, mc = (t(4), '-' + t(4)) if not n else ('-' + t(4), t(4))
                    s_, ms = (t(5), '-' + t(5)) if not n else ('-' + t(5), t(5))
                    b = vK + 32 * e + 16 * hf + 4 * k + r
                    cg += [f"v_cvt_pk_bf16_f32 v{b}, {c}, {ms}", f"v_cvt_pk_bf16_f32 v{b + 8}, {s_}, {c}"]
    cg += [f"v_lshrrev_b32 {t(6)}, 3, v0", f"v_min_u32 {t(6)}, 5, {t(6)}", f"s_mul_i32 s5, s{sW}, 5", f"s_add_u32 s5, s5, 1",
           f"v_add_u32 {t(7)}, s5, {t(6)}", f"v_cmp_eq_u32 vcc, 5, {t(6)}", f"v_and_b32 {t(8)}, 7, v0", f"s_lshr_b32 s5, s{sPR}, 3",
           f"v_cndmask_b32 {t(7)}, {t(7)}, 0, vcc", f"s_mul_i32 s5, s5, 168", f"v_lshl_add_u32 {t(7)}, {t(7)}, 3, {t(8)}",
           f"v_add_u32 {t(7)}, s5, {t(7)}", f"v_lshlrev_b32 {t(7)}, 2, {t(7)}", f"v_add_u32 v{vPB}, {FL_B}, {t(7)}"]
    cg = [(x, None) for x in cg]

    def main_mfma(u, bsrc, first):
        L = []
        for st in range(4):
            for dt in range(5):
                acc = ar(4 * (4 * dt + st))
                c = "0" if first else acc
                L.append(f"v_mfma_f32_16x16x32_bf16 {acc}, {fr(u, dt)}, {bsrc(st)}, {c}")
        return L

    def mix(a, b):
        out = []
        a, b = list(a), list(b)
        while a or b:
            while a and a[0][0].startswith('s_'):
                out.append(a.pop(0))
            if a:
                out.append(a.pop(0))
            if b:
                out.append(b.pop(0))
        return out

    per = (len(cg) + 7) // 8
    for u in range(NG):
        if u in (4, 8):
            stamp(p, "p3")
        if u + 2 == 8:
            poll_check(vFH1 + 0, f"v{vPH}", SWS, 0, 2)
        if u + 2 == NG:
            poll_check(vFB1, f"v{vPB}", SWS, 0, 1)
        fill = loads(u + 2)
        extra = cg[(u - 1) * per:u * per] if 1 <= u <= 8 else []
        main = main_mfma(u, lambda st: fr(u, 5 + st), u == 0)
        for n, m in enumerate(main):
            p(m)
            if n % 2 == 0:
                while fill and fill[0][0].startswith('s_'):
                    emit([fill.pop(0)])
                if fill:
                    emit([fill.pop(0)])
            else:
                emit(extra[:2])
                extra = extra[2:]
        emit(fill)
        emit(extra)
        if u == 1:
            p.wait_tag('U')
            p(f"buffer_store_dword v{vONE}, v{vFLB}, {sr(SWS)}, 0 offen sc1")
        if u == 4:
            poll_issue(vFH1, f"v{vPH}", SWS, 0)
        if u == 8:
            poll_issue(vFB1, f"v{vPB}", SWS, 0)
    stamp(p, "p3")

    def inv_unit(u, fill):
        L = []
        for k in range(2):
            for st in range(4):
                e, hf = st >> 1, st & 1
                for part in range(2):
                    d = vr(vZ + 8 * st + 4 * part)
                    c = "0" if k == 0 else d
                    L.append(f"v_mfma_f32_16x16x32_bf16 {d}, {fr(u, 5 + 2 * e + k)}, {vr(vK + 32 * e + 16 * hf + 8 * part + 4 * k)}, {c}")
        fill = list(fill)
        h = len(fill) // 2
        weave(L, fill[:h + 2], 0, 3)
        for st in range(4):
            for r in range(4):
                p(f"v_cvt_pk_bf16_f32 v{vZP + 4 * st + r}, v{vZ + 8 * st + r}, v{vZ + 8 * st + 4 + r}")
        weave(main_mfma(u, lambda st: vr(vZP + 4 * st), False), fill[h + 2:], 0, 3)

    vLA, vGAo, vXI, vPW = vT + 8, vT + 12, vT + 16, vT + 11
    fin_addr = [f"v_and_b32 {t(0)}, 15, v0", f"v_mul_u32_u24 {t(0)}, {RS}, {t(0)}", f"v_lshrrev_b32 {t(1)}, 4, v0",
                f"v_lshl_add_u32 {t(0)}, {t(1)}, 4, {t(0)}", f"s_mul_i32 s5, s{sW}, {64 * RS}", f"v_add_u32 v{vPW}, s5, {t(0)}",
                f"s_lshl_b32 s5, s{sW}, 6", f"v_add_u32 {t(1)}, s5, v0",
                f"s_mul_i32 s6, s{sNB}, 160", f"s_mul_i32 s7, s{sPR}, 2560", f"s_add_u32 s6, s6, s7"]
    for it in range(3):
        fin_addr += [f"v_add_u32 {t(2)}, {256 * it}, {t(1)}", f"v_mul_u32_u24 {t(3)}, 6554, {t(2)}", f"v_lshrrev_b32 {t(3)}, 16, {t(3)}",
                     f"v_mul_u32_u24 {t(4)}, 10, {t(3)}", f"v_sub_u32 {t(4)}, {t(2)}, {t(4)}",
                     f"v_mul_u32_u24 {t(5)}, {RS}, {t(3)}", f"v_lshl_add_u32 v{vLA + it}, {t(4)}, 5, {t(5)}",
                     f"v_and_b32 {t(5)}, 31, {t(3)}", f"v_lshlrev_b32 {t(5)}, 6, {t(5)}", f"v_lshrrev_b32 {t(6)}, 5, {t(3)}",
                     f"v_add_u32 {t(5)}, {t(5)}, {t(6)}", f"v_mul_u32_u24 {t(5)}, 1280, {t(5)}",
                     f"v_lshl_add_u32 {t(5)}, {t(4)}, 4, {t(5)}", f"v_add_u32 v{vGAo + it}, s6, {t(5)}"]
    fin_addr += [f"s_cmp_ge_u32 s{sW}, 2", f"s_cselect_b32 s5, {OOB}, 0", f"v_or_b32 v{vGAo + 2}, s5, v{vGAo + 2}"]
    xl = [(f"buffer_load_dwordx4 {vr(vXI + 4 * it)}, v{vGAo + it}, {sr(SX)}, 0 offen", None) for it in range(3)]

    for u in range(NG, 17):
        if u + 2 < 17:
            inv_unit(u, loads(u + 2))
        elif u + 2 == 17:
            p(f"s_cmp_lg_u32 s{sW}, 0\ns_cbranch_scc1 L_nold")
            p.opt_begin()
            emit(loads(17))
            p.opt_end()
            p("L_nold:")
            for x in fin_addr:
                p(x)
            inv_unit(u, xl)
        else:
            inv_unit(u, [])
    p(f"s_cmp_lg_u32 s{sW}, 0\ns_cbranch_scc1 L_nou")
    p.opt_begin()
    inv_unit(17, [])
    p.opt_end()
    p("L_nou:")
    stamp(p, "p3")
    stamp(p)

    for st in range(4):
        for dt in range(5):
            p(f"ds_write_b128 v{vPW}, {ar(4 * (4 * dt + st))} offset:{st * 16 * RS + dt * 64}")
    p.wait_lds()
    p("s_barrier")
    stamp(p, "p3")

    def fin_reads(it):
        b = 60 + 32 * it
        for w in range(4):
            for hh in range(2):
                p(f"ds_read_b128 {vr(b + 8 * w + 4 * hh)}, v{vLA + it} offset:{w * 64 * RS + 16 * hh}")

    def fin(it):
        b = 60 + 32 * it
        o = 160 + 8 * it
        for j in range(4):
            p(f"v_lshlrev_b32 v{o + 2 * j}, 16, v{vXI + 4 * it + j}\nv_and_b32 v{o + 2 * j + 1}, 0xffff0000, v{vXI + 4 * it + j}")
        for w in range(4):
            for j in range(0, 8, 2):
                p(f"v_pk_add_f32 {vr(o + j, 2)}, {vr(o + j, 2)}, {vr(b + 8 * w + j, 2)}")
        for j in range(4):
            p(f"v_cvt_pk_bf16_f32 v{b + j}, v{o + 2 * j}, v{o + 2 * j + 1}")
        p(f"buffer_store_dwordx4 {vr(b)}, v{vGAo + it}, {sr(SO)}, 0 offen")

    fin_reads(0)
    fin_reads(1)
    fin(0)
    p(f"s_cmp_ge_u32 s{sW}, 2\ns_cbranch_scc1 L_nof0")
    p.opt_begin()
    fin_reads(2)
    p.opt_end()
    p("L_nof0:")
    fin(1)
    p(f"s_cmp_ge_u32 s{sW}, 2\ns_cbranch_scc1 L_nof")
    p.opt_begin()
    fin(2)
    p.opt_end()
    p("L_nof:")
    stamp_flush(p)
    p(f"{end}:")
    p("s_endpgm")


def build():
    name = NAME + "_kernel"
    out = [f"; @launch grid=(256,1,1) block=(256,1,1) lds={LDSB}",
           '.amdgcn_target "amdgcn-amd-amdhsa--gfx950"\n.text',
           f".globl {name}\n.p2align 8\n.type {name},@function\n{name}:"]
    p = Prog()
    kernel(p)
    out.append(p.text())
    out.append(f""".section .rodata,"a"
.p2align 6
.amdhsa_kernel {name}
  .amdhsa_next_free_vgpr 512
  .amdhsa_next_free_sgpr 102
  .amdhsa_accum_offset 256
  .amdhsa_group_segment_fixed_size 0
  .amdhsa_kernarg_size 80
  .amdhsa_user_sgpr_count 2
  .amdhsa_user_sgpr_kernarg_segment_ptr 1
  .amdhsa_system_sgpr_workgroup_id_x 1
.end_amdhsa_kernel
""")
    return "\n".join(out)


if __name__ == "__main__":
    dst = sys.argv[1] if len(sys.argv) > 1 else f"cdna_kernels/{NAME}.s"
    for a in sys.argv[2:]:
        if a == "stamps":
            STAMPS = True
        elif a.startswith("zoom="):
            ZOOM = a[5:]
        else:
            k, v = a.split("=")
            OPT[k] = int(v)
    open(dst, "w").write(build())
```

```python
import struct, sys
from asmlib import Prog

NAME = "parallel_sum__spectral_gfnet__glu_gated_reglu__prompt"
S, D, F, NT = 2048, 640, 1536, 21

WS_T, WS_U, WS_H, WS_WD, WS_IT = 0, 0x300000, 0x600000, 0xC00000, 0xE00000
WS_FL = 0xF80000
FL_A, FL_H, FL_B = WS_FL, WS_FL + 1024, WS_FL + 5120
OOB = 0x7FFFFF00
SPIN_MAX = 1 << 20

OPT = dict(pf_code=1, pf_x=1, pf_w=2, pf_f=2, dpre=1, quota=15, outf='', xo=1)


def f2u(x):
    return struct.unpack('<I', struct.pack('<f', x))[0]


def hx(x):
    return hex(f2u(x))


def vr(i, n=4): return f"v[{i}:{i + n - 1}]"
def ar(i, n=4): return f"a[{i}:{i + n - 1}]"
def sr(i, n=4): return f"s[{i}:{i + n - 1}]"


SX, SG, SU, SD, SWS, SO, SWR, SWI = 28, 32, 36, 40, 44, 48, 52, 56
SDBG = 8
sW = 60

STAMPS = False
ZOOM = ""
WS_ST = 0xF00000
_nst = [0]
STAMP_BASE = 84


def stamp(p, grp=""):
    if STAMPS and grp in (ZOOM, "*"):
        i = _nst[0]
        assert i < 9
        p(f"s_memrealtime s[{STAMP_BASE + 2 * i}:{STAMP_BASE + 1 + 2 * i}]")
        _nst[0] += 1


def stamp_flush(p):
    if STAMPS:
        p.wait_all_vm()
        stamp(p, "*")
        p("s_waitcnt lgkmcnt(0)")
        n = _nst[0]
        p(f"s_lshl_b32 s3, s2, 2\ns_add_u32 s3, s3, s{sW}\ns_lshl_b32 s3, s3, 6\ns_add_u32 s3, s3, {WS_ST}")
        p("v_mov_b32 v1, 0")
        for i in range(n):
            p(f"v_mov_b32 v2, s{STAMP_BASE + 2 * i}")
            p(f"buffer_store_dword v2, v1, {sr(SWS)}, s3 offen offset:{4 * i}")
        if OPT.get('dbg'):
            p(f"v_cmp_eq_u32 vcc, 0, v0\ns_cmp_eq_u32 s{sW}, 0\ns_cselect_b32 s5, 0, 512\nv_mov_b32 v3, 512\nv_mov_b32 v4, s5\nv_cndmask_b32 v1, v3, v4, vcc")
            p(f"s_not_b32 s5, s{STAMP_BASE}\nv_mov_b32 v2, s5\nbuffer_atomic_umax v2, v1, {sr(SDBG)}, 0 offen offset:4 sc1")
            for i in range(n):
                p(f"v_mov_b32 v{5 + i}, s{STAMP_BASE + 2 * i}")
                p(f"buffer_atomic_umax v{5 + i}, v1, {sr(SDBG)}, 0 offen offset:{8 + 4 * i} sc1")
        _nst[0] = 0


TAB, XS, RING, MISC = 0, 40960, 90112, 155648
EX0, EX1 = RING + 6 * 8192, RING + 7 * 8192
P2C = TAB + 20480
P2X = RING
CSX = MISC
LDSB = 163840
RS = 336


def kernel(p):
    end = "L_end"
    sRB, sCB, sS2, sT0, sT1, sFA, sFB = 61, 62, 63, 64, 65, 66, 67
    sA, sB, sM0X, sM0R, sONE, sHA, sHB = 68, 69, 70, 71, 72, 73, 74
    sT32, sC5, sJOB, sSPIN = 75, 76, 77, 78
    sPR, sNB = 79, 80
    sQ, sT2, sK1 = 81, 82, 83
    sWD, sa, sa4 = 16, 17, 18
    sH0, sU0, sIT, sb0, sb1 = 19, 20, 21, 22, 23
    vWDG = vTWO = 1
    vXG = 2
    vXR = 6
    vL16 = 10
    vGA, vGB = 11, 12
    vRA, vRB = 13, 14
    vCA, vCB_ = 15, 16
    vSUM, vSQ = 17, 18
    vFLA = 19
    vNM, vR2, vSGN = 20, 22, 24
    vDC, vEXW, vTST = 21, 23, 25
    vHST, vSTA = 26, 27
    vT = 28
    vC1 = 60
    vXT = 76
    vTB = 108
    vACC = 124
    vFR = 188
    vCF = 220
    vCS = 228
    vIND = 232
    vRR = 236
    vFLH, vONE, vOOB, vPF = 252, 253, 254, 255
    vWR, vWI, vIN, vIN2 = vRR, vC1, vXT, vXT + 16
    t = lambda i: f"v{vT + i}"

    def emit(L):
        for text, tag in L:
            p(text, tag=tag)

    def junk_load(vaddr, srd, soff="0"):
        p(f"buffer_load_dword v{vPF}, {vaddr}, {sr(srd)}, {soff} offen", tag='pf', junk=True)

    p.reset()
    p(f"s_cmp_ge_u32 s2, 256\ns_cbranch_scc1 {end}")
    stamp(p, "*")
    p("s_load_dwordx16 s[8:23], s[0:1], 0")
    p("s_load_dwordx4 s[24:27], s[0:1], 64")
    p("v_lshrrev_b32 v1, 6, v0")
    p("v_and_b32 v0, 63, v0")
    p(f"v_readfirstlane_b32 s{sW}, v1")
    p(f"v_mov_b32 v{vOOB}, {OOB}\nv_mov_b32 v{vONE}, 1")
    p(f"s_and_b32 s{sQ}, s2, 7\ns_lshr_b32 s4, s2, 3")
    if OPT['pf_code']:
        p(f"s_getpc_b64 {sr(SO, 2)}\nL_pc:\ns_mov_b32 s{SO + 2}, L_end-L_pc\ns_mov_b32 s{SO + 3}, 0x20000")
        p(f"s_lshl_b32 s5, s4, 2\ns_add_u32 s5, s5, s{sW}\ns_mul_i32 s5, s5, 384")
        p(f"v_cmp_gt_u32 vcc, 3, v0\nv_lshl_add_u32 {t(6)}, v0, 7, s5\nv_cndmask_b32 {t(6)}, v{vOOB}, {t(6)}, vcc")
        junk_load(t(6), SO)
    p(f"s_and_b32 s5, s{sQ}, 3\ns_lshl_b32 s5, s5, 2\ns_and_b32 s6, s4, 3\ns_add_u32 s{sRB}, s5, s6")
    p(f"s_lshr_b32 s5, s{sQ}, 2\ns_lshl_b32 s5, s5, 3\ns_lshr_b32 s6, s4, 2\ns_add_u32 s{sCB}, s5, s6")
    p(f"s_lshl_b32 s{sS2}, s{sRB}, 2\ns_add_u32 s{sS2}, s{sS2}, s{sW}")
    p(f"s_lshl_b32 s3, s2, 2\ns_add_u32 s3, s3, s{sW}")
    p(f"v_lshlrev_b32 v{vL16}, 4, v0")
    vXP, vWPF = vT + 31, vCS
    p(f"v_mul_u32_u24 {t(5)}, 26, v0\nv_lshrrev_b32 {t(5)}, 8, {t(5)}\nv_mul_u32_u24 {t(6)}, 10, {t(5)}\nv_sub_u32 {t(6)}, v0, {t(6)}")
    p(f"s_and_b32 s5, s{sCB}, 7\ns_lshl_b32 s5, s5, 8\ns_add_u32 s5, s5, s{sS2}\nv_lshl_add_u32 {t(5)}, {t(5)}, 6, s5")
    p(f"v_mul_u32_u24 {t(5)}, 1280, {t(5)}\nv_cmp_gt_u32 vcc, 40, v0\nv_lshl_add_u32 {t(5)}, {t(6)}, 7, {t(5)}")
    p(f"v_cndmask_b32 v{vXP}, v{vOOB}, {t(5)}, vcc")

    p(f"s_mul_i32 s5, s3, {15 * 128}\nv_cmp_gt_u32 vcc, 15, v0\nv_lshl_add_u32 {t(5)}, v0, 7, s5\nv_cndmask_b32 v{vWPF}, v{vOOB}, {t(5)}, vcc")
    for srd, src, size in ((SX, 8, S * D * 2), (SG, 16, D * F * 2), (SU, 18, D * F * 2), (SWS, 26, 0x10000000), (SD, 20, D * F * 2),
                           (SO, 22, S * D * 2), (SWR, 10, S * 321 * 2), (SWI, 12, S * 321 * 2), (SDBG, 24, 256)):
        p(f"s_mov_b32 s{srd}, s{src}\ns_mov_b32 s{srd + 1}, s{src + 1}\ns_mov_b32 s{srd + 2}, {size}\ns_mov_b32 s{srd + 3}, 0x20000")
        if srd == SX and OPT['pf_x']:
            junk_load(f"v{vXP}", SX)
        if srd in (SG, SU) and OPT['pf_w'] == 1:
            junk_load(f"v{vWPF}", srd)
    stamp(p, "pro")

    p(f"s_lshr_b32 s5, s{sQ}, 1\ns_lshl_b32 s5, s5, 3\ns_and_b32 s6, s4, 7\ns_add_u32 s{sPR}, s5, s6")
    p(f"s_and_b32 s5, s{sQ}, 1\ns_lshl_b32 s5, s5, 2\ns_lshr_b32 s6, s4, 3\ns_add_u32 s{sNB}, s5, s6")
    p(f"s_mov_b32 s{sT0}, s{sCB}")
    p(f"s_and_b32 s7, s{sRB}, 1\ns_lshl_b32 s7, s7, 3\ns_xor_b32 s7, s7, s{sCB}")
    p(f"s_lshr_b32 s5, s7, 2\ns_add_u32 s5, s5, 16\ns_and_b32 s6, s7, 3\ns_cmp_eq_u32 s6, 0")
    p(f"s_cselect_b32 s{sT1}, s5, 0\ns_cmp_eq_u32 s7, 1\ns_cselect_b32 s{sT1}, 20, s{sT1}")
    masks = []
    for g in range(2):
        m = 0
        for j in range(32):
            if ((8 * g + (j >> 2)) ^ (8 * (j & 1))) not in (0, 1, 4, 8, 12):
                m |= 1 << j
        assert bin(m).count('1') == 22
        masks.append(m)
    p(f"s_mov_b32 s5, {masks[0]}\ns_cmp_lt_u32 s{sQ}, 4\ns_cselect_b32 s5, s5, {masks[1]}")
    p(f"s_bfm_b32 s6, s4, 0\ns_and_b32 s5, s5, s6\ns_bcnt1_i32_b32 s{sT2}, s5")
    p(f"s_cmp_lg_u32 s{sT1}, 0\ns_cselect_b32 s{sJOB}, 31, s{sT2}")
    p(f"s_lshl_b32 s{sK1}, s{sQ}, 2\ns_add_u32 s{sK1}, s{sK1}, s{sW}")
    p(f"s_mul_i32 s5, s{sCB}, 96\ns_and_b32 s6, s{sCB}, 1\ns_lshl_b32 s7, s6, 5\ns_add_u32 s{sFA}, s5, s7")
    p(f"s_xor_b32 s6, s6, 1\ns_lshl_b32 s6, s6, 6\ns_add_u32 s{sFB}, s5, s6")
    p(f"s_mov_b32 s{sONE}, 0x3f803f80")
    p(f"s_mul_hi_u32 s{sT32}, s2, {(2**32 + 4) // 5}\ns_mul_i32 s5, s{sT32}, 5\ns_sub_u32 s{sC5}, s2, s5")
    p(f"s_mul_i32 s{sM0X}, s{sW}, 12288\ns_add_u32 s{sM0X}, s{sM0X}, {XS}")
    p(f"s_lshl_b32 s{sM0R}, s{sW}, 11\ns_add_u32 s{sM0R}, s{sM0R}, {RING}")

    p(f"v_lshrrev_b32 {t(0)}, 3, v0\nv_lshlrev_b32 {t(0)}, 6, {t(0)}\nv_add_u32 {t(0)}, s{sS2}, {t(0)}")
    p(f"v_mul_u32_u24 {t(0)}, 1280, {t(0)}")
    p(f"v_and_b32 {t(1)}, 7, v0\nv_lshrrev_b32 {t(2)}, 4, v0\nv_xor_b32 {t(3)}, {t(1)}, {t(2)}\nv_xor_b32 {t(4)}, 4, {t(3)}")
    for i in range(4):
        p(f"v_lshl_add_u32 v{vXG + i}, {t(3 + (i & 1))}, 4, {t(0)}")
        if i:
            p(f"v_add_u32 v{vXG + i}, {i * 655360 - i * 1024}, v{vXG + i}")
    p(f"v_and_b32 {t(0)}, 31, v0\nv_lshrrev_b32 {t(1)}, 5, v0")
    p(f"v_lshrrev_b32 {t(2)}, 1, {t(0)}\nv_and_b32 {t(2)}, 7, {t(2)}\nv_xor_b32 {t(2)}, {t(2)}, {t(1)}")
    p(f"v_lshlrev_b32 {t(3)}, 7, {t(0)}\nv_add_u32 {t(3)}, s{sM0X}, {t(3)}")
    for tt in range(4):
        p(f"v_xor_b32 {t(4)}, {2 * tt}, {t(2)}")
        p(f"v_lshl_add_u32 v{vXR + tt}, {t(4)}, 4, {t(3)}")
    p(f"v_lshrrev_b32 {t(7)}, 2, v0\ns_lshl_b32 s5, s{sT32}, 5\nv_add_u32 {t(7)}, s5, {t(7)}\nv_mul_u32_u24 {t(7)}, 1280, {t(7)}")
    p(f"v_and_b32 {t(6)}, 3, v0\nv_lshl_add_u32 {t(7)}, {t(6)}, 4, {t(7)}\ns_lshl_b32 s5, s{sC5}, 8\ns_lshl_b32 s6, s{sW}, 6\ns_add_u32 s5, s5, s6")
    p(f"v_add_u32 v{vWDG}, s5, {t(7)}")

    def x_dma(sl, part=(0, 1, 2, 3), head=True):
        if head:
            p(f"s_add_u32 m0, s{sM0X}, {(sl % 3) * 4096}")
            p(f"s_movk_i32 s{sA}, {sl * 128}")
        for i in part:
            p(f"buffer_load_dwordx4 v{vXG + i}, {sr(SX)}, s{sA} offen offset:{i * 1024} lds", tag=('x', sl))

    if OPT['xo'] == 0:
        x_dma(0)
    stamp(p, "pro")

    def gen_table(sT, base):
        p(f"v_and_b32 {t(0)}, 15, v0\ns_lshl_b32 s5, s{sT}, 4\nv_add_u32 {t(0)}, s5, {t(0)}")
        p(f"v_cmp_ge_u32 vcc, 320, {t(0)}\nv_cvt_f32_u32 {t(1)}, {t(0)}\nv_mul_f32 {t(1)}, {hx(1.0 / 640)}, {t(1)}")
        p(f"v_cndmask_b32 {t(6)}, 0, 1.0, vcc\nv_cos_f32 {t(8)}, {t(1)}")
        p(f"v_lshrrev_b32 {t(2)}, 5, v0\nv_lshlrev_b32 {t(2)}, 3, {t(2)}\ns_mul_i32 s5, s{sW}, 80\nv_add_u32 {t(2)}, s5, {t(2)}")
        p(f"v_mul_u32_u24 {t(2)}, {t(2)}, {t(0)}\nv_cvt_f32_u32 {t(2)}, {t(2)}\nv_mul_f32 {t(2)}, {hx(1.0 / 640)}, {t(2)}")
        p(f"v_fract_f32 {t(2)}, {t(2)}\nv_add_f32 {t(8)}, {t(8)}, {t(8)}")
        p(f"v_bfe_u32 {t(3)}, v0, 4, 1\nv_cvt_f32_u32 {t(3)}, {t(3)}\nv_fmac_f32 {t(2)}, {hx(0.25)}, {t(3)}")
        p(f"v_mul_f32 {t(4)}, {hx(16.0)}, {t(1)}\nv_fract_f32 {t(4)}, {t(4)}")
        p(f"s_mul_i32 s5, s{sW}, 5120\nv_add_u32 {t(7)}, s5, v{vL16}")
        c = lambda tt, j: f"v{vACC + 8 * tt + j}"
        for tt in range(5):
            p(f"v_add_f32 {c(tt, 1)}, {t(2)}, {t(1)}\nv_cos_f32 {c(tt, 0)}, {t(2)}\nv_cos_f32 {c(tt, 1)}, {c(tt, 1)}")
            if tt < 4:
                p(f"v_add_f32 {t(2)}, {t(2)}, {t(4)}")
        for tt in range(5):
            p(f"v_pk_mul_f32 {vr(vACC + 8 * tt, 2)}, {vr(vACC + 8 * tt, 2)}, {vr(vT + 6, 2)} op_sel_hi:[1,0]")
        for j in range(2, 8):
            for tt in range(5):
                p(f"v_fma_f32 {c(tt, j)}, {t(8)}, {c(tt, j - 1)}, -{c(tt, j - 2)}")
        for tt in range(5):
            a = vXT + 4 * tt
            for j in range(4):
                p(f"v_cvt_pk_bf16_f32 v{a + j}, {c(tt, 2 * j)}, {c(tt, 2 * j + 1)}")
            p(f"ds_write_b128 {t(7)}, {vr(a)} offset:{base + tt * 1024}")

    gen_table(sT0, TAB)
    stamp(p, "pro")
    p(f"s_cmp_eq_u32 s{sT1}, 0\ns_cbranch_scc1 L_notab1")
    r1 = p.opt_begin()
    gen_table(sT1, TAB + 20480)
    p("s_branch L_tabs")
    p.opt_end()
    p("L_notab1:")
    p.opt_begin(excl=r1)
    p(f"v_and_b32 {t(2)}, 15, v0\nv_cvt_f32_u32 {t(3)}, {t(2)}\nv_mul_f32 {t(3)}, {hx(1.0 / 64)}, {t(3)}")
    p(f"v_lshrrev_b32 {t(0)}, 4, v0\nv_lshlrev_b32 {t(4)}, 2, {t(0)}\ns_lshl_b32 s5, s{sW}, 4\nv_add_u32 {t(4)}, s5, {t(4)}\nv_cvt_f32_u32 {t(4)}, {t(4)}")
    p(f"v_mul_f32 {t(8)}, {t(4)}, {t(3)}")
    for r in range(4):
        p(f"v_cos_f32 {t(10 + 2 * r)}, {t(8)}\nv_sin_f32 {t(11 + 2 * r)}, {t(8)}")
        if r < 3:
            p(f"v_add_f32 {t(8)}, {t(8)}, {t(3)}")
    p(f"s_lshl_b32 s5, s{sW}, 10\nv_add_u32 {t(7)}, s5, v{vL16}")
    for mt in range(4):
        for r in range(4):
            c, s_ = t(10 + 2 * r), t(11 + 2 * r)
            lo, hi = [(c, s_), ('-' + s_, c), ('-' + c, '-' + s_), (s_, '-' + c)][(mt * r) % 4]
            p(f"v_cvt_pk_bf16_f32 v{vXT + 4 * mt + r}, {lo}, {hi}")
        p(f"ds_write_b128 {t(7)}, {vr(vXT + 4 * mt)} offset:{P2C + mt * 4096}")
    p.opt_end()
    p("L_tabs:")
    stamp(p, "pro")
    p("s_cmp_lg_u32 s2, 0\ns_cbranch_scc1 L_noclr")
    p.opt_begin()
    for i in range(4):
        p(f"v_mov_b32 {t(24 + i)}, 0")
    p(f"s_lshl_b32 s5, s{sW}, 11\ns_add_u32 s5, s5, {WS_FL}")
    for i in range(2):
        p(f"buffer_store_dwordx4 {vr(vT + 24)}, v{vL16}, {sr(SWS)}, s5 offen offset:{i * 1024} sc1", tag='clr')
    p.opt_end()
    p("L_noclr:")

    p(f"v_and_b32 {t(0)}, 31, v0\nv_cvt_f32_u32 {t(1)}, {t(0)}\nv_mul_f32 {t(1)}, {hx(1.0 / 2048)}, {t(1)}")
    p(f"v_lshrrev_b32 {t(2)}, 5, v0\nv_lshlrev_b32 {t(2)}, 8, {t(2)}\nv_add_u32 {t(2)}, s{sS2}, {t(2)}\nv_cvt_f32_u32 {t(2)}, {t(2)}")
    p(f"v_mul_f32 {t(2)}, {t(2)}, {t(1)}\nv_mul_f32 {t(1)}, {hx(64.0)}, {t(1)}\nv_mul_f32 {t(4)}, {hx(5.0)}, {t(1)}")
    p(f"v_and_b32 {t(3)}, 1, v0\nv_mul_u32_u24 {t(3)}, 0x8000, {t(3)}\nv_lshl_or_b32 {t(3)}, {t(3)}, 16, {t(3)}")
    for j in range(8):
        p(f"v_cos_f32 {t(8 + j)}, {t(2)}\nv_sin_f32 {t(16 + j)}, {t(2)}")
        if j < 7:
            p(f"v_add_f32 {t(2)}, {t(2)}, {t(4) if j == 3 else t(1)}")
    for j in range(4):
        p(f"v_cvt_pk_bf16_f32 v{vC1 + j}, {t(8 + 2 * j)}, {t(9 + 2 * j)}")
        p(f"v_cvt_pk_bf16_f32 v{vC1 + 8 + j}, {t(16 + 2 * j)}, {t(17 + 2 * j)}")
    for j in range(4):
        p(f"v_xor_b32 v{vC1 + 4 + j}, {t(3)}, v{vC1 + j}")
        p(f"v_xor_b32 v{vC1 + 12 + j}, {t(3)}, v{vC1 + 8 + j}")
    x_dma(1 if OPT['xo'] == 0 else 0)
    stamp(p, "pro")

    p(f"v_lshrrev_b32 {t(0)}, 2, v0\nv_and_b32 {t(1)}, 7, {t(0)}")
    p(f"s_lshl_b32 s5, s{sW}, 3\nv_add_u32 {t(1)}, s5, {t(1)}\nv_mul_u32_u24 {t(1)}, 3072, {t(1)}")
    p(f"v_and_b32 {t(2)}, 3, v0\nv_lshlrev_b32 {t(2)}, 4, {t(2)}")
    p(f"v_lshrrev_b32 {t(3)}, 5, v0\nv_lshl_add_u32 {t(3)}, {t(3)}, 6, {t(2)}")
    p(f"s_lshl_b32 s5, s{sFA}, 1\nv_add3_u32 v{vGA}, {t(1)}, {t(3)}, s5")
    p(f"s_lshl_b32 s5, s{sW}, 4\nv_add_u32 {t(1)}, s5, {t(0)}\nv_mul_u32_u24 {t(1)}, 3072, {t(1)}")
    p(f"s_lshl_b32 s5, s{sFB}, 1\nv_add3_u32 v{vGB}, {t(1)}, {t(2)}, s5")
    p(f"v_and_b32 {t(0)}, 31, v0\nv_lshrrev_b32 {t(1)}, 5, v0")
    p(f"v_bfe_u32 {t(3)}, v0, 2, 2\nv_lshlrev_b32 {t(3)}, 6, {t(3)}")
    p(f"v_and_b32 {t(2)}, 3, v0\nv_lshl_add_u32 {t(3)}, {t(2)}, 3, {t(3)}")
    p(f"v_bfe_u32 {t(2)}, v0, 4, 1\nv_lshl_add_u32 {t(3)}, {t(2)}, 5, {t(3)}")
    p(f"v_add_u32 {t(3)}, {RING}, {t(3)}")
    p(f"v_lshl_add_u32 v{vRA}, {t(1)}, 11, {t(3)}")
    p(f"v_lshl_add_u32 v{vRB}, {t(1)}, 9, {t(3)}")
    p(f"s_lshl_b32 s5, s{sW}, 9\nv_add_u32 v{vCA}, s5, v{vRA}")
    p(f"s_and_b32 s5, s{sW}, 1\ns_lshl_b32 s5, s5, 10\ns_lshr_b32 s6, s{sW}, 1\ns_lshl_b32 s6, s6, 11\ns_add_u32 s5, s5, s6")
    p(f"v_add_u32 v{vCB_}, s5, v{vRB}")
    p(f"v_and_b32 {t(2)}, 15, v0\nv_bfe_u32 {t(3)}, v0, 4, 1\nv_cmp_eq_u32 vcc, {t(2)}, {t(3)}")
    p(f"v_mov_b32 {t(4)}, s{sONE}\nv_mov_b32 v{vSUM}, 0")
    p(f"v_cndmask_b32 v{vIND}, 0, {t(4)}, vcc")
    for i in range(1, 4):
        p(f"v_mov_b32 v{vIND + i}, v{vIND}")
    p(f"v_lshlrev_b32 {t(4)}, 2, {t(1)}\nv_add_u32 {t(4)}, {t(4)}, {t(3)}\nv_lshlrev_b32 {t(4)}, 8, {t(4)}")
    p(f"v_lshl_add_u32 {t(4)}, {t(2)}, 4, {t(4)}\ns_lshl_b32 s5, s{sW}, 2\ns_add_u32 s5, s5, {EX0}\nv_add_u32 v{vEXW}, s5, {t(4)}")
    p(f"v_lshrrev_b32 {t(4)}, 4, v0\ns_lshl_b32 s5, s{sW}, 3\nv_add_u32 {t(4)}, s5, {t(4)}")
    p(f"v_mul_u32_u24 {t(4)}, 86016, {t(4)}\nv_lshl_add_u32 v{vTST}, {t(2)}, 4, {t(4)}")
    p(f"v_lshlrev_b32 {t(4)}, 10, {t(3)}\nv_lshl_add_u32 {t(4)}, {t(1)}, 8, {t(4)}\nv_lshl_add_u32 v{vHST}, {t(2)}, 4, {t(4)}")
    p(f"s_mul_i32 s5, s{sS2}, 48\ns_lshr_b32 s6, s{sFA}, 5\ns_add_u32 s6, s6, s5\ns_lshl_b32 s6, s6, 11\ns_add_u32 s{sHA}, s6, {WS_H}")
    p(f"s_lshr_b32 s6, s{sFB}, 5\ns_add_u32 s6, s6, s5\ns_lshl_b32 s6, s6, 11\ns_add_u32 s{sHB}, s6, {WS_H}")
    p(f"v_cmp_eq_u32 vcc, 0, {t(0)}\nv_and_b32 {t(4)}, 1, v0\nv_lshlrev_b32 {t(4)}, 31, {t(4)}\nv_or_b32 v{vSGN}, 0x3f800000, {t(4)}")
    p(f"v_mov_b32 {t(4)}, {hx(-640.0)}\nv_cndmask_b32 v{vDC}, 0, {t(4)}, vcc")
    p(f"v_lshlrev_b32 {t(4)}, 4, {t(1)}\ns_add_u32 s5, s{sM0X}, 12032\nv_add_u32 v{vSTA}, s5, {t(4)}")
    p(f"s_lshl_b32 s5, s2, 2\ns_add_u32 s5, s5, {FL_A}\ns_cmp_eq_u32 s{sW}, 0\ns_cselect_b32 s5, s5, {OOB}")
    p(f"s_lshl_b32 s6, s{sS2}, 4\ns_add_u32 s6, s6, s{sCB}\ns_lshl_b32 s6, s6, 2\ns_add_u32 s6, s6, {FL_H}")
    p(f"v_cmp_eq_u32 vcc, 0, v0\nv_mov_b32 {t(4)}, s5\nv_mov_b32 {t(6)}, s6\nv_mov_b32 v{vSQ}, 0")
    p(f"v_cndmask_b32 v{vFLA}, v{vOOB}, {t(4)}, vcc\nv_cndmask_b32 v{vFLH}, v{vOOB}, {t(6)}, vcc")
    p(f"s_mul_i32 s5, s{sW}, 12\ns_mul_i32 s6, s{sPR}, 96\ns_add_u32 s6, s6, s5\ns_lshl_b32 s6, s6, 11\ns_add_u32 s{sH0}, s6, {WS_H}")
    p(f"s_mul_i32 s5, s5, 40\ns_mul_i32 s7, s{sNB}, 5\ns_add_u32 s5, s5, s7\ns_lshl_b32 s5, s5, 10\ns_add_u32 s{sWD}, s5, {WS_WD}")
    p(f"s_mul_i32 s5, s{sW}, 5\ns_add_u32 s5, s5, 1\ns_mul_i32 s6, s{sPR}, 42\ns_add_u32 s6, s6, s5\ns_lshl_b32 s6, s6, 11\ns_add_u32 s{sU0}, s6, {WS_U}")
    p(f"s_mul_i32 s5, s5, 40\ns_add_u32 s5, s5, s7\ns_lshl_b32 s5, s5, 10\ns_add_u32 s{sIT}, s5, {WS_IT}")
    if OPT['xo'] == 1:
        x_dma(1)
    stamp(p, "pro")

    vIT = vACC + 48
    p(f"s_mul_hi_u32 s5, s3, {(2**32 + 39) // 40}\ns_mul_i32 s6, s5, 40\ns_sub_u32 s6, s3, s6")
    p(f"v_and_b32 {t(0)}, 15, v0\ns_lshl_b32 s6, s6, 4\nv_add_u32 {t(0)}, s6, {t(0)}")
    p(f"v_lshrrev_b32 {t(1)}, 4, v0\nv_lshlrev_b32 {t(1)}, 2, {t(1)}\ns_lshl_b32 s5, s5, 4\nv_add_u32 {t(1)}, s5, {t(1)}")
    a1 = 1.0 / (S * D)
    p(f"v_cmp_gt_u32 vcc, 320, {t(1)}\nv_mov_b32 {t(2)}, {hx(2 * a1)}\nv_mov_b32 {t(3)}, {hx(a1)}")
    p(f"v_mul_u32_u24 {t(9)}, {t(1)}, {t(0)}\nv_cvt_f32_u32 {t(9)}, {t(9)}\nv_cndmask_b32 {t(8)}, 0, {t(2)}, vcc")
    p(f"v_cmp_eq_u32 vcc, 0, {t(1)}\nv_mul_f32 {t(9)}, {hx(1.0 / 640)}, {t(9)}\nv_fract_f32 {t(9)}, {t(9)}\nv_cndmask_b32 {t(4)}, {t(8)}, {t(3)}, vcc")
    p(f"v_cmp_eq_u32 vcc, 320, {t(1)}\nv_cvt_f32_u32 {t(0)}, {t(0)}\nv_mul_f32 {t(0)}, {hx(1.0 / 640)}, {t(0)}\nv_cndmask_b32 {t(4)}, {t(4)}, {t(3)}, vcc")
    for r in range(4):
        p(f"v_cos_f32 {t(10 + 2 * r)}, {t(9)}\nv_sin_f32 {t(11 + 2 * r)}, {t(9)}")
        if r < 3:
            p(f"v_add_f32 {t(9)}, {t(9)}, {t(0)}")
    for r in range(4):
        am = vT + (8 if r else 4)
        p(f"v_pk_mul_f32 {vr(vT + 10 + 2 * r, 2)}, {vr(vT + 10 + 2 * r, 2)}, {vr(am, 2)} op_sel_hi:[1,0]")
    for r in range(4):
        p(f"v_cvt_pk_bf16_f32 v{vIT + r}, {t(10 + 2 * r)}, -{t(11 + 2 * r)}")
    x_dma(2)
    stamp(p, "pro")
    stamp(p)
    p("s_cmp_lg_u32 s2, 0\ns_cbranch_scc1 L_noclr2")
    p.opt_begin()
    p.wait_tag('clr')
    p.opt_end()
    p("L_noclr2:")
    p.wait_lds()
    p("s_barrier")
    p(f"s_cmp_lg_u32 s3, 0\ns_cbranch_scc1 L_nogo")
    p.opt_begin()
    p(f"v_mov_b32 {t(0)}, 0\nbuffer_store_dword v{vONE}, {t(0)}, {sr(SDBG)}, 0 offen sc1")
    p.opt_end()
    p("L_nogo:")

    npoll = [0]

    def poll_issue(dst, vaddr, srd, soff, x4=False):
        op, d = ("buffer_load_dwordx4", vr(dst)) if x4 else ("buffer_load_dword", f"v{dst}")
        p(f"{op} {d}, {vaddr}, {sr(srd)}, {soff} offen sc1")

    def poll_check(dst, vaddr, srd, soff, thr, x4=False):
        n = npoll[0]
        npoll[0] += 1
        assert p._opt is None

        def test():
            if x4:
                p(f"v_min3_u32 v{dst}, v{dst}, v{dst + 1}, v{dst + 2}\nv_min_u32 v{dst}, v{dst}, v{dst + 3}")
            p(f"v_cmp_le_u32 vcc, {thr}, v{dst}\ns_nop 0\ns_cmp_eq_u64 vcc, exec")

        test()
        p(f"s_cbranch_scc1 L_ok{n}")
        p.opt_begin()
        p(f"s_mov_b32 s{sSPIN}, {SPIN_MAX}")
        p(f"L_spin{n}:")
        p("s_sleep 1")
        poll_issue(dst, vaddr, srd, soff, x4)
        p("s_waitcnt vmcnt(0)")
        test()
        p(f"s_cbranch_scc1 L_ok{n}")
        p(f"s_sub_u32 s{sSPIN}, s{sSPIN}, 1\ns_cmp_lg_u32 s{sSPIN}, 0\ns_cbranch_scc1 L_spin{n}")
        p.opt_end()
        p(f"L_ok{n}:")

    def ring_piece(st, mat):
        if st >= 30:
            return []
        slot = (st % 8) * 8192
        va, off = (vGA, st * 98304) if st < 20 else (vGB, (st - 20) * 196608)
        L = []
        if mat == 0:
            L.append((f"s_mov_b32 s{sB}, {off}", None))
        L.append((f"s_add_u32 m0, s{sM0R}, {slot + 1024 * mat}", None))
        L.append((f"buffer_load_dwordx4 v{va}, {sr(SU if mat else SG)}, s{sB} offen lds", ('w', st)))
        return L

    def ring_dma(st):
        emit(ring_piece(st, 0) + ring_piece(st, 1))

    def touch(srd, nlines, tmp):
        p(f"s_mul_i32 s5, s3, {nlines * 128}\nv_cmp_gt_u32 vcc, {nlines}, v0\nv_lshl_add_u32 {tmp}, v0, 7, s5")
        p(f"v_cndmask_b32 {tmp}, v{vOOB}, {tmp}, vcc")
        junk_load(tmp, srd)

    A1, A2 = vACC, vACC + 16

    xbuf = lambda sl: (vXT, vXT + 16, vFR)[sl % 3]

    def x_reads(sl, part=(0, 1)):
        if 0 in part:
            for tt in range(4):
                p(f"ds_read_b128 {vr(xbuf(sl) + 4 * tt)}, v{vXR + tt} offset:{(sl % 3) * 4096}")
        if 1 in part:
            for tt in range(4):
                p(f"ds_read_b128 {ar(16 * sl + 4 * tt)}, v{vXR + tt} offset:{(sl % 3) * 4096}")

    def tab_read(k, base):
        p(f"ds_read_b128 {vr(vTB + 4 * (k % 4))}, v{vL16} offset:{base + (k % 20) * 1024}")

    def wd_dma():
        p(f"s_lshl_b32 s7, s{sW}, 11\ns_add_u32 m0, s7, {MISC}\ns_movk_i32 s6, {16 * 1280}")
        p(f"buffer_load_dwordx4 v{vWDG}, {sr(SD)}, 0 offen lds", tag='wd')
        p(f"s_add_u32 m0, s7, {MISC + 1024}")
        p(f"buffer_load_dwordx4 v{vWDG}, {sr(SD)}, s6 offen lds", tag='wd')

    def wd_job():
        p(f"v_lshrrev_b32 {t(16)}, 5, v0\nv_lshlrev_b32 {t(16)}, 4, {t(16)}\nv_bfe_u32 {t(17)}, v0, 4, 1\nv_lshl_add_u32 {t(16)}, {t(17)}, 2, {t(16)}")
        p(f"v_bfe_u32 {t(17)}, v0, 2, 2\nv_add_u32 {t(16)}, {t(16)}, {t(17)}\nv_lshlrev_b32 {t(16)}, 6, {t(16)}")
        p(f"v_and_b32 {t(17)}, 3, v0\nv_lshl_add_u32 {t(16)}, {t(17)}, 3, {t(16)}\ns_lshl_b32 s5, s{sW}, 11\ns_add_u32 s5, s5, {MISC}\nv_add_u32 {t(16)}, s5, {t(16)}")
        p.wait_tag('wd')
        for jt in range(2):
            for q in range(2):
                p(f"ds_read_b64_tr_b16 {vr(vXT + 4 * jt + 2 * q, 2)}, {t(16)} offset:{jt * 32 + q * 512}")
        p(f"s_mul_i32 s5, s{sT32}, 40\ns_lshl_b32 s6, s{sC5}, 3\ns_add_u32 s5, s5, s6\ns_lshl_b32 s6, s{sW}, 1\ns_add_u32 s5, s5, s6")
        p(f"s_lshl_b32 s5, s5, 10\ns_add_u32 s5, s5, {WS_WD}\ns_cmp_lt_u32 s2, 240\ns_cselect_b32 s5, s5, {OOB}")
        for jt in range(2):
            p(f"buffer_store_dwordx4 {vr(vXT + 4 * jt)}, v{vL16}, {sr(SWS)}, s5 offen offset:{jt * 1024} sc1", tag='p0')

    stamp(p, "p0")
    p.wait_tag(('x', 0))
    stamp(p, "p0")
    x_reads(0)
    for tt in range(4):
        tab_read(tt, TAB)
    p.wait_tag(('x', 1))
    p.wait_lds()
    x_reads(1)
    x_dma(3)
    for sl in range(10):
        xb = xbuf(sl)
        if sl in (1, 3, 5, 7, 9):
            stamp(p, "p0")
        for j in range(16):
            p(f"v_dot2c_f32_bf16 v{vSUM}, s{sONE}, v{xb + j}")
            p(f"v_dot2c_f32_bf16 v{vSQ}, v{xb + j}, v{xb + j}")
        p.wait_lds()

        def mf(tt):
            k = 4 * sl + tt
            acc = A1 if k < 20 else A2
            c = "0" if k in (0, 20) else vr(acc, 16)
            p(f"v_mfma_f32_32x32x16_bf16 {vr(acc, 16)}, {vr(xb + 4 * tt)}, {vr(vTB + 4 * tt)}, {c}")

        nop = lambda: None
        if sl + 4 < 10:
            side = [lambda: x_dma(sl + 4, (0, 1)), lambda: x_dma(sl + 4, (2, 3), False)]
        elif sl == 6:
            side = [wd_dma, nop]
            if OPT['pf_w'] == 2:
                side = [lambda: (junk_load(f"v{vWPF}", SG), junk_load(f"v{vWPF}", SU)), wd_dma]
        elif OPT['pf_w'] == 2:
            side = [nop, nop]
        else:
            st = 2 * (sl - 7)
            side = [lambda: ring_dma(st), lambda: ring_dma(st + 1)]
        mf(0)
        side[0]()
        mf(1)
        side[1]()
        if sl + 2 < 10:
            p.wait_tag(('x', sl + 2))
        mf(2)
        if sl + 2 < 10:
            x_reads(sl + 2, (0,))
        mf(3)
        if sl + 1 < 10:
            for tt in range(4):
                tab_read(4 * sl + 4 + tt, TAB)
        if sl + 2 < 10:
            x_reads(sl + 2, (1,))
        if sl == 6:
            p(f"s_lshl_b32 s5, s3, 10\ns_add_u32 s5, s5, {WS_IT}\ns_cmp_lt_u32 s3, 840\ns_cselect_b32 s5, s5, {OOB}")
            p(f"buffer_store_dwordx4 {vr(vIT)}, v{vL16}, {sr(SWS)}, s5 offen sc1", tag='p0')
            p(f"v_mov_b32 {t(30)}, 0")
            poll_issue(vT + 31, t(30), SDBG, 0)
    stamp(p)
    stamp(p, "p1")

    p(f"v_mov_b32 {t(0)}, v{vSUM}\nv_mov_b32 {t(1)}, v{vSQ}")
    p(f"v_permlane32_swap_b32 {t(0)}, v{vSUM}\nv_permlane32_swap_b32 {t(1)}, v{vSQ}")
    p(f"v_add_f32 {t(0)}, {t(0)}, v{vSUM}\nv_add_f32 {t(1)}, {t(1)}, v{vSQ}")
    p(f"v_mul_f32 {t(0)}, {hx(1.0 / 640)}, {t(0)}\nv_mul_f32 {t(1)}, {hx(1.0 / 640)}, {t(1)}")
    p(f"v_fma_f32 {t(1)}, -{t(0)}, {t(0)}, {t(1)}\nv_max_f32 {t(1)}, 0, {t(1)}")
    p(f"v_cvt_pk_bf16_f32 {t(2)}, {t(0)}, {t(1)}")
    p(f"v_lshlrev_b32 {t(0)}, 16, {t(2)}\nv_and_b32 {t(1)}, 0xffff0000, {t(2)}")
    p(f"v_add_f32 {t(1)}, {hx(1e-5)}, {t(1)}\nv_cvt_pk_bf16_f32 {t(1)}, {t(1)}, {t(1)}\nv_and_b32 {t(1)}, 0xffff0000, {t(1)}")
    p(f"v_sqrt_f32 {t(1)}, {t(1)}\nv_and_b32 {t(2)}, 31, v0\nv_cvt_pk_bf16_f32 {t(1)}, {t(1)}, {t(1)}\nv_and_b32 {t(1)}, 0xffff0000, {t(1)}")
    p(f"v_rcp_f32 {t(1)}, {t(1)}")
    p(f"v_lshlrev_b32 {t(2)}, 2, {t(2)}\ns_add_u32 s5, s{sM0X}, 12032\nv_add_u32 {t(2)}, s5, {t(2)}")
    p(f"ds_write2_b32 {t(2)}, {t(1)}, {t(0)} offset0:0 offset1:32")
    p(f"v_sub_f32 v{vNM}, 0, {t(0)}\nv_mul_f32 v{vR2}, {t(1)}, {t(1)}")
    p.wait_lds()
    for a in range(4):
        p(f"ds_read_b128 {vr(vRR + 4 * a)}, v{vSTA} offset:{32 * a}")

    def filter_touch():
        p(f"s_lshr_b32 s4, s2, 3\ns_lshl_b32 s4, s4, 2\ns_add_u32 s4, s4, s{sW}\ns_and_b32 s5, s4, 63\ns_lshl_b32 s5, s5, 3\ns_add_u32 s5, s5, s{sQ}")
        p(f"s_mul_i32 s5, s5, {4 * 642}\ns_and_b32 s5, s5, 0xffffff80\nv_cmp_gt_u32 vcc, 22, v0\nv_lshl_add_u32 {t(29)}, v0, 7, s5")
        p(f"s_cmp_lt_u32 s4, 64\ns_cselect_b32 s5, 0, {OOB}\ns_cselect_b32 s6, {OOB}, 0\nv_cndmask_b32 {t(29)}, v{vOOB}, {t(29)}, vcc")
        junk_load(t(29), SWR, "s5")
        junk_load(t(29), SWI, "s6")

    def dft_front(sT, ex, first):
        for i in range(0, 16, 2):
            p(f"v_pk_fma_f32 {vr(A1 + i, 2)}, {vr(A2 + i, 2)}, {vr(vSGN, 2)}, {vr(A1 + i, 2)} op_sel_hi:[1,0,1]")
        if first:
            if OPT['pf_f'] == 2:
                filter_touch()
            p(f"s_cmp_lg_u32 s{sT}, 0\ns_cbranch_scc1 L_nodc")
            p.opt_begin()
            for a in range(4):
                p(f"ds_read_b128 {vr(vT + 4 * a)}, v{vSTA} offset:{128 + 32 * a}")
            for i in range(16):
                p(f"v_fmac_f32 v{A1 + i}, v{vDC}, {t(i)}")
            p.opt_end()
            p("L_nodc:")
        for i in range(0, 16, 2):
            p(f"v_pk_mul_f32 {vr(A1 + i, 2)}, {vr(A1 + i, 2)}, {vr(vRR + i, 2)}")
        for j in range(8):
            p(f"v_cvt_pk_bf16_f32 {t(j)}, v{A1 + 2 * j}, v{A1 + 2 * j + 1}")
        P_, Q_ = vACC + 32, vACC + 48
        p(f"v_mfma_f32_32x32x16_bf16 {vr(P_, 16)}, {vr(vC1)}, {vr(vT)}, 0")
        p(f"v_mfma_f32_32x32x16_bf16 {vr(P_, 16)}, {vr(vC1 + 4)}, {vr(vT + 4)}, {vr(P_, 16)}")
        p(f"v_mfma_f32_32x32x16_bf16 {vr(Q_, 16)}, {vr(vC1 + 8)}, {vr(vT)}, 0")
        p(f"v_mfma_f32_32x32x16_bf16 {vr(Q_, 16)}, {vr(vC1 + 12)}, {vr(vT + 4)}, {vr(Q_, 16)}")
        if first:
            if OPT['pf_w'] == 2:
                ring_dma(0)
                ring_dma(1)
            wd_job()
        for q in range(8):
            p(f"v_permlane16_swap_b32 v{P_ + 2 * q}, v{P_ + 2 * q + 1}")
        for q in range(8):
            p(f"v_permlane16_swap_b32 v{Q_ + 2 * q}, v{Q_ + 2 * q + 1}")
        for q in range(8):
            p(f"v_add_f32 v{P_ + 2 * q}, v{P_ + 2 * q}, v{Q_ + 2 * q + 1}")
            p(f"v_sub_f32 v{P_ + 2 * q + 1}, v{P_ + 2 * q + 1}, v{Q_ + 2 * q}")
            p(f"v_cvt_pk_bf16_f32 {t(8 + q)}, v{P_ + 2 * q}, v{P_ + 2 * q + 1}")
            p(f"ds_write_b32 v{vEXW}, {t(8 + q)} offset:{ex - EX0 + (8 * (q >> 1) + 2 * (q & 1)) * 256}")

    def dft_back(sT, ex):
        p(f"s_lshl_b32 s5, s{sW}, 11\ns_add_u32 s5, s5, {ex}\nv_add_u32 {t(16)}, s5, v{vL16}")
        for e in range(2):
            p(f"ds_read_b128 {vr(vT + 20 + 4 * e)}, {t(16)} offset:{e * 1024}")
        p(f"s_lshl_b32 s5, s{sT}, 4\ns_add_u32 s5, s5, s{sRB}\ns_lshl_b32 s5, s5, 8\ns_add_u32 s5, s5, {WS_T}")
        p(f"s_add_u32 s6, s5, {4 * 86016}")
        p(f"buffer_store_dwordx4 {vr(vT + 20)}, v{vTST}, {sr(SWS)}, s5 offen sc1", tag='p0')
        p(f"buffer_store_dwordx4 {vr(vT + 24)}, v{vTST}, {sr(SWS)}, s6 offen sc1", tag='p0')

    stamp(p, "p1")
    dft_front(sT0, EX0, True)
    stamp(p, "p1")
    if OPT['pf_w'] == 2:
        ring_dma(2)
        ring_dma(3)
    poll_check(vT + 31, t(30), SDBG, 0, 1)
    p.wait_lds()
    p("s_barrier")
    dft_back(sT0, EX0)
    if OPT['pf_w'] == 2:
        ring_dma(4)
        ring_dma(5)
    stamp(p, "p1")

    p(f"s_cmp_eq_u32 s{sT1}, 0\ns_cbranch_scc1 L_nou1")
    p.opt_begin()
    for k in range(3):
        tab_read(k, TAB + 20480)
    for k in range(40):
        acc = A1 if k < 20 else A2
        c = "0" if k in (0, 20) else vr(acc, 16)
        p(f"v_mfma_f32_32x32x16_bf16 {vr(acc, 16)}, {ar(4 * k)}, {vr(vTB + 4 * (k % 4))}, {c}")
        if k + 3 < 40:
            tab_read(k + 3, TAB + 20480)
    dft_front(sT1, EX1, False)
    p.wait_lds()
    p("s_barrier")
    dft_back(sT1, EX1)
    p.opt_end()
    p("L_nou1:")
    stamp(p)
    stamp(p, "p1")

    def readsA(k, tile):
        st, tt = k >> 1, k & 1
        fr = vFR + 16 * (k & 1) + 4 * tile
        for q in range(2):
            p(f"ds_read_b64_tr_b16 {vr(fr + 2 * q, 2)}, v{vRA} offset:{(st % 8) * 8192 + tt * 4096 + tile * 512 + q * 256}")

    def readsCA(k):
        st, tt = k >> 1, k & 1
        for q in range(2):
            p(f"ds_read_b64_tr_b16 {vr(vCF + 4 * (k & 1) + 2 * q, 2)}, v{vCA} offset:{(st % 8) * 8192 + tt * 4096 + q * 256}")

    vCSW, vCSR, vPA, vPH = vXG, vXG + 1, vXG + 2, vXG + 3
    vWA, vFLB, vEX2, vEX3 = vXR, vXR + 1, vXR + 2, vXR + 3
    vUST = vDC
    vFA4, vFH1 = vT + 24, vT + 28
    sTA, sUS = sA, sM0X
    late = []
    late += [f"v_lshrrev_b32 {t(0)}, 4, v0", f"v_lshlrev_b32 {t(1)}, 7, {t(0)}", f"v_add_u32 {t(1)}, s{sK1}, {t(1)}",
             f"v_mul_u32_u24 {t(1)}, 642, {t(1)}", f"v_and_b32 {t(2)}, 15, v0", f"s_lshl_b32 s5, s{sT2}, 4", f"v_add_u32 {t(3)}, s5, {t(2)}",
             f"v_lshl_add_u32 v{vWA}, {t(3)}, 1, {t(1)}", f"s_cmp_ge_u32 s{sJOB}, 21\ns_cselect_b32 s5, {OOB}, 0", f"v_or_b32 v{vWA}, s5, v{vWA}"]
    n_wa = len(late)
    late += [f"v_lshlrev_b32 {t(1)}, 4, {t(0)}", f"v_lshl_add_u32 {t(1)}, {t(2)}, 6, {t(1)}", f"s_lshl_b32 s5, s{sW}, 7",
             f"v_add_u32 {t(1)}, s5, {t(1)}", f"v_add_u32 {t(3)}, 2048, v{vL16}", f"v_cmp_gt_u32 vcc, 2, {t(2)}",
             f"v_lshrrev_b32 {t(4)}, 5, v0", f"v_lshlrev_b32 {t(4)}, 4, {t(4)}", f"v_cndmask_b32 {t(1)}, {t(3)}, {t(1)}, vcc",
             f"v_add_u32 v{vCSW}, {CSX}, {t(1)}", f"v_add_u32 v{vCSR}, {CSX}, {t(4)}",
             f"v_and_b32 {t(1)}, 3, v0", f"v_bfe_u32 {t(3)}, v0, 2, 1", f"v_lshl_add_u32 {t(1)}, {t(3)}, 4, {t(1)}",
             f"s_lshl_b32 s5, s{sPR}, 5\ns_lshl_b32 s6, s{sW}, 2", "s_add_u32 s5, s5, s6", f"v_add_u32 {t(1)}, s5, {t(1)}",
             f"v_lshlrev_b32 {t(1)}, 2, {t(1)}", f"v_add_u32 v{vPH}, {FL_H}, {t(1)}", f"v_add_u32 v{vPA}, {FL_A}, v{vL16}",
             f"s_mul_i32 s5, s{sK1}, 21\ns_add_u32 s5, s5, s{sT2}", f"s_lshl_b32 s5, s5, 12\ns_add_u32 s5, s5, {WS_T}",
             f"s_cmp_ge_u32 s{sJOB}, 21\ns_cselect_b32 s{sTA}, {OOB}, s5",
             f"v_lshlrev_b32 {t(1)}, 10, {t(0)}", f"v_lshl_add_u32 {t(1)}, {t(2)}, 4, {t(1)}",
             f"s_lshl_b32 s5, s{sW}, 2\ns_add_u32 s5, s5, {P2X}", f"v_add_u32 v{vEX2}, s5, {t(1)}",
             f"s_lshl_b32 s5, s{sW}, 12\ns_add_u32 s5, s5, {P2X}", f"v_add_u32 v{vEX3}, s5, v{vL16}",
             f"s_lshl_b32 s5, s{sW}, 4", f"v_add_u32 {t(1)}, s5, {t(0)}", f"v_mul_u32_u24 {t(1)}, {21 * 2048}, {t(1)}",
             f"v_lshl_add_u32 v{vUST}, {t(2)}, 4, {t(1)}",
             f"s_lshl_b32 s5, s{sT2}, 3\ns_add_u32 s5, s5, s{sQ}", f"s_lshl_b32 s6, s5, 8\ns_add_u32 s{sUS}, s6, {WS_U}",
             f"s_mul_i32 s6, s{sW}, 168\ns_add_u32 s5, s5, s6", f"s_lshl_b32 s5, s5, 2\ns_add_u32 s5, s5, {FL_B}",
             f"s_cmp_ge_u32 s{sJOB}, 21\ns_cselect_b32 s5, {OOB}, s5", f"v_mov_b32 {t(1)}, s5", f"v_cmp_eq_u32 vcc, 0, v0",
             f"v_mov_b32 v{vTWO}, 2", f"v_cndmask_b32 v{vFLB}, v{vOOB}, {t(1)}, vcc"]

    for i in range(0, 16, 2):
        p(f"v_mov_b64 {vr(vWR + i, 2)}, 0\nv_mov_b64 {vr(vWI + i, 2)}, 0")
    if OPT['pf_f'] == 1:
        filter_touch()
    for x in late[:n_wa]:
        p(x)
    late = late[n_wa:]
    p.wait_tag(('w', 0))
    p.wait_lds()
    p("s_barrier")
    for tile in range(4):
        readsA(0, tile)
    readsCA(0)
    ring_dma(6)
    for k in range(40):
        nxt = k + 1 < 40
        j = (k + 1) >> 1

        def mfA(tile):
            acc = vACC + 16 * tile
            c = "0" if k == 0 else vr(acc, 16)
            p(f"v_mfma_f32_32x32x16_bf16 {vr(acc, 16)}, {vr(vFR + 16 * (k & 1) + 4 * tile)}, {ar(4 * k)}, {c}")

        mfA(0)
        if k & 1 and nxt:
            if j == 4:
                p.wait_tag(('w', j), 'p0')
            else:
                p.wait_tag(('w', j))
            p("s_barrier")
        if nxt:
            readsA(k + 1, 0)
        if not k & 1 and late:
            p(late.pop(0))
        mfA(1)
        piece = (ring_piece(j + 6, 0)[1:] if nxt else []) if k & 1 else (ring_piece(j + 6, 1) if k > 0 else [])
        emit(piece[:-1])
        if nxt:
            readsA(k + 1, 1)
        emit(piece[-1:])
        mfA(2)
        if nxt:
            readsA(k + 1, 2)
            readsCA(k + 1)
        mfA(3)
        if k >= 8 and not k & 1:
            i = (k - 8) >> 1
            p(f"s_mov_b32 s7, {(i >> 2) * 328704 + (i & 3) * 20544}")
        if nxt:
            readsA(k + 1, 3)
        if k >= 8:
            i = (k - 8) >> 1
            if k & 1:
                p(f"buffer_load_short_d16_hi v{vWI + i}, v{vWA}, {sr(SWI)}, s7 offen")
            else:
                p(f"buffer_load_short_d16_hi v{vWR + i}, v{vWA}, {sr(SWR)}, s7 offen")
        if k == 37:
            poll_issue(vFA4, f"v{vPA}", SWS, 0, x4=True)
        if k == 7:
            p(f"buffer_store_dword v{vONE}, v{vFLA}, {sr(SWS)}, 0 offen sc1")
        c = "0" if k == 0 else vr(vCS)
        p(f"v_mfma_f32_16x16x32_bf16 {vr(vCS)}, {vr(vCF + 4 * (k & 1))}, {vr(vIND)}, {c}")
        if not k & 1 and k < 38:
            emit(ring_piece(j + 7, 0)[:1])
        elif late:
            p(late.pop(0))
    for x in late:
        p(x)
    stamp(p)
    stamp(p, "p1")

    def cs_reads(b, off):
        for a in range(4):
            p(f"ds_read_b128 {vr(b + 4 * a)}, v{vCSR} offset:{off + 32 * a}")

    def cs_apply(acc, b):
        for i in range(0, 16, 2):
            p(f"v_pk_fma_f32 {vr(acc + i, 2)}, {vr(b + i, 2)}, {vr(vNM, 2)}, {vr(acc + i, 2)} op_sel_hi:[1,0,1]")

    def glu_finish(G, U, soff, tag):
        for i in range(0, 16, 2):
            p(f"v_max_f32 v{G + i}, 0, v{G + i}\nv_max_f32 v{G + i + 1}, 0, v{G + i + 1}")
            p(f"v_pk_mul_f32 {vr(U + i, 2)}, {vr(U + i, 2)}, {vr(vR2, 2)} op_sel_hi:[1,0]")
        for u in range(2):
            for i in range(8 * u, 8 * u + 8, 2):
                p(f"v_pk_mul_f32 {vr(G + i, 2)}, {vr(G + i, 2)}, {vr(U + i, 2)}")
            for j in range(4 * u, 4 * u + 4):
                p(f"v_cvt_pk_bf16_f32 v{U + 8 * u + (j & 3)}, v{G + 2 * j}, v{G + 2 * j + 1}")
            p(f"buffer_store_dwordx4 {vr(U + 8 * u)}, v{vHST}, {sr(SWS)}, {soff} offen offset:{u * 512} sc1", tag=tag)

    def readsB(k, mat):
        st, tt = 20 + (k >> 2), k & 3
        fr = vFR + 8 * (k & 1) + 4 * mat
        for q in range(2):
            p(f"ds_read_b64_tr_b16 {vr(fr + 2 * q, 2)}, v{vRB} offset:{(st % 8) * 8192 + tt * 2048 + mat * 1024 + q * 256}")

    def readsCB(k2):
        st, tt = 20 + (k2 >> 1), (k2 & 1) * 2
        for q in range(2):
            p(f"ds_read_b64_tr_b16 {vr(vCF + 4 * (k2 & 1) + 2 * q, 2)}, v{vCB_} offset:{(st % 8) * 8192 + tt * 2048 + q * 256}")

    p(f"ds_write_b128 v{vCSW}, {vr(vCS)}")
    p.wait_tag(('w', 20))
    p.wait_lds()
    p("s_barrier")
    cs_reads(vTB, 0)
    cs_reads(vXT, 256)
    cs_reads(vXT + 16, 128)
    ring_dma(26)
    cs_apply(vACC, vTB)
    cs_reads(vTB, 384)
    readsB(0, 0)
    readsB(0, 1)
    readsCB(0)
    cs_apply(vACC + 32, vXT)
    emit(ring_piece(27, 0))
    glu_finish(vACC, vACC + 32, f"s{sHA}", 'hA')
    emit(ring_piece(27, 1))
    p(f"s_add_u32 s{sHA}, s{sHA}, 2048")
    cs_apply(vACC + 16, vXT + 16)
    cs_apply(vACC + 48, vTB)
    glu_finish(vACC + 16, vACC + 48, f"s{sHA}", 'hA')
    stamp(p, "p1")

    ORDER = [0, 1, 4, 5, 6, 7, 10, 11, 2, 3, 8, 9]
    NG = 12
    wreg = lambda u, j: ar(160 + 20 * (u % 4) + 4 * j)
    hreg = lambda u, j: ar(80 + 16 * (u % 5) + 4 * j)

    def unit_off(u):
        return ORDER[u] if u < NG else (u - NG if u < 17 else -1)

    def w_loads(u):
        base = sWD if u < NG else sIT
        L = [(f"s_add_u32 s{sa}, s{base}, {(unit_off(u) * 40960) & 0xffffffff}", None)]
        for j in range(4):
            L.append((f"buffer_load_dwordx4 {wreg(u, j)}, v{vL16}, {sr(SWS)}, s{sa} offen offset:{j * 1024} sc1", None))
        L.insert(2, (f"s_add_u32 s{sa4}, s{sa}, 4096", None))
        L.append((f"buffer_load_dwordx4 {wreg(u, 4)}, v{vL16}, {sr(SWS)}, s{sa4} offen sc1", None))
        return L

    def h_loads(u):
        base, dl = (sH0, 48 * 2048) if u < NG else (sU0, 21 * 2048)
        L = [(f"s_add_u32 s{sb0}, s{base}, {(unit_off(u) * 2048) & 0xffffffff}", None)]
        for j in range(4):
            L.append((f"buffer_load_dwordx4 {hreg(u, j)}, v{vL16}, {sr(SWS)}, s{sb1 if j >> 1 else sb0} offen offset:{(j & 1) * 1024} sc1", None))
        L.insert(2, (f"s_add_u32 s{sb1}, s{sb0}, {dl}", None))
        return L

    def take(fill):
        out = []
        while fill and fill[0][0].startswith('s_'):
            out.append(fill.pop(0))
        if fill:
            out.append(fill.pop(0))
        return out

    NPRE = 4 if OPT['dpre'] else 0
    pre = [x for u in range(NPRE) for x in w_loads(u)]

    BG, BU = vACC, vACC + 16
    aP2 = 0
    rot = []
    for i in range(16):
        rot += [f"v_alignbit_b32 v{vIN2 + i}, v{vIN + i}, v{vIN + i}, 16", f"v_xor_b32 v{vIN2 + i}, 0x80000000, v{vIN2 + i}"]
    for k in range(40):
        nxt = k + 1 < 40
        j = 20 + ((k + 1) >> 2)

        def mfB(mat):
            acc = vACC + 16 * mat
            c = "0" if k == 0 else vr(acc, 16)
            p(f"v_mfma_f32_32x32x16_bf16 {vr(acc, 16)}, {vr(vFR + 8 * (k & 1) + 4 * mat)}, {ar(4 * k)}, {c}")

        mfB(0)
        if (k & 3) == 3 and nxt:
            p.wait_tag(('w', j))
            p("s_barrier")
        piece = ring_piece(26 + (k >> 2), k & 1) if (k & 3) in (0, 1) and k >= 8 else []
        if k >= 14 and (k & 3) != 3:
            piece = take(pre)
        emit(piece[:-1])
        if nxt:
            readsB(k + 1, 0)
        emit(piece[-1:])
        if k in (0, 6, 8, 14, 22, 30, 39):
            stamp(p, "pb")
        if k == 34:
            poll_issue(vFH1, f"v{vPH}", SWS, 0)
        mfB(1)
        if nxt:
            readsB(k + 1, 1)
        if 1 <= k < 5:
            p(f"buffer_load_dwordx4 {vr(vIN + 4 * (k - 1))}, v{vL16}, {sr(SWS)}, s{sTA} offen offset:{(k - 1) * 1024} sc1")
        if k == 0:
            poll_check(vFA4, f"v{vPA}", SWS, 0, 1, x4=True)
        if k == OPT.get('kha', 11):
            p.wait_tag('hA')
            p(f"buffer_store_dword v{vONE}, v{vFLH}, {sr(SWS)}, 0 offen sc1")
        if 17 <= k < 33:
            p(f"ds_read_b128 {ar(aP2 + 4 * (k - 17))}, v{vL16} offset:{P2C + (k - 17) * 1024}")
        if k >= 24:
            p(rot.pop(0))
            if not k & 1:
                p(rot.pop(0))
        if k & 1:
            k2 = k >> 1
            c = "0" if k2 == 0 else vr(vCS)
            p(f"v_mfma_f32_16x16x32_bf16 {vr(vCS)}, {vr(vCF + 4 * (k2 & 1))}, {vr(vIND)}, {c}")
            if k2 + 1 < 20:
                readsCB(k2 + 1)
    emit(pre)
    stamp(p)
    stamp(p, "p2")
    for x in rot:
        p(x)
    p(f"ds_write_b128 v{vCSW}, {vr(vCS)} offset:512")
    p.wait_lds()
    p("s_barrier")
    cs_reads(vFR, 512)
    cs_reads(vFR + 16, 512 + 256)
    cs_reads(vACC + 32, 512 + 128)
    cs_reads(vACC + 48, 512 + 384)
    cs_apply(BG, vFR)
    cs_apply(BG, vFR + 16)
    cs_apply(BU, vACC + 32)
    cs_apply(BU, vACC + 48)
    glu_finish(BG, BU, f"s{sHB}", 'hB')
    stamp(p, "p2")

    def weave(main, fill, start=0, step=1):
        fill = list(fill)
        for n, m in enumerate(main):
            p(m)
            if n >= start and (n - start) % step == 0:
                emit(take(fill))
        emit(fill)

    vX, vY = vACC + 32, vFR
    first = ([] if NPRE else w_loads(0)) + h_loads(0) + h_loads(1)
    second = ([] if NPRE else w_loads(1)) + h_loads(2)
    poll_check(vFH1, f"v{vPH}", SWS, 0, 1)
    stamp(p, "p2")
    p(f"s_cmp_ge_u32 s{sJOB}, 21\ns_cbranch_scc1 L_nop2")
    r2 = p.opt_begin()

    def dft64(bre, bim):
        L = []
        for k in range(4):
            for mt in range(4):
                for part, b in ((0, bre), (1, bim)):
                    d = vX + 16 * part + 4 * mt
                    c = "0" if k == 0 else vr(d)
                    L.append(f"v_mfma_f32_16x16x32_bf16 {vr(d)}, {ar(aP2 + 16 * mt + 4 * k)}, {vr(b + 4 * k)}, {c}")
        return L

    weave(dft64(vIN, vIN2), first, 0, 3)
    stamp(p, "p2")
    for i in range(16):
        xr, xi, wr_, wi_ = f"v{vX + i}", f"v{vX + 16 + i}", f"v{vWR + i}", f"v{vWI + i}"
        a, b = t(2 * (i % 4)), t(2 * (i % 4) + 1)
        p(f"v_mul_f32 {a}, {xr}, {wr_}\nv_mul_f32 {b}, {xr}, {wi_}")
        p(f"v_fma_f32 {a}, -{xi}, {wi_}, {a}\nv_fmac_f32 {b}, {xi}, {wr_}")
        p(f"v_cvt_pk_bf16_f32 v{vY + i}, {a}, -{b}\nv_cvt_pk_bf16_f32 v{vY + 16 + i}, {b}, {a}")
    p.wait_tag('hB')
    p(f"buffer_store_dword v{vTWO}, v{vFLH}, {sr(SWS)}, 0 offen sc1")
    weave(dft64(vY, vY + 16), second, 0, 3)
    stamp(p, "p2")
    for i in range(16):
        p(f"v_cvt_pk_bf16_f32 {t(i)}, v{vX + i}, v{vX + 16 + i}")
        p(f"ds_write_b32 v{vEX2}, {t(i)} offset:{(16 * (i >> 2) + (i & 3)) * 256}")
    p.wait_lds()
    p("s_barrier")
    for e in range(4):
        p(f"ds_read_b128 {vr(vIN + 4 * e)}, v{vEX3} offset:{e * 1024}")
    for e in range(4):
        p(f"buffer_store_dwordx4 {vr(vIN + 4 * e)}, v{vUST}, {sr(SWS)}, s{sUS} offen sc1", tag='U')
        if e < 3:
            p(f"s_add_u32 s{sUS}, s{sUS}, {4 * 21 * 2048}")
    p("s_branch L_p3")
    p.opt_end()
    p("L_nop2:")
    p.opt_begin(excl=r2)
    emit(first)
    p.wait_tag('hB')
    p(f"buffer_store_dword v{vTWO}, v{vFLH}, {sr(SWS)}, 0 offen sc1")
    emit(second)
    p.opt_end()
    p("L_p3:")
    stamp(p, "p2")
    stamp(p, "p3")
    stamp(p)

    vZ, vZP, vK = 124, 156, 60
    vFH2, vFB1, vPB = vT + 28, vT + 29, vT + 30
    cg = [f"v_lshrrev_b32 {t(6)}, 3, v0", f"v_min_u32 {t(6)}, 5, {t(6)}", f"s_mul_i32 s5, s{sW}, 5", f"s_add_u32 s5, s5, 1",
          f"v_add_u32 {t(7)}, s5, {t(6)}", f"v_cmp_eq_u32 vcc, 5, {t(6)}", f"v_and_b32 {t(8)}, 7, v0", f"s_lshr_b32 s5, s{sPR}, 3",
          f"v_cndmask_b32 {t(7)}, {t(7)}, 0, vcc", f"s_mul_i32 s5, s5, 168", f"v_lshl_add_u32 {t(7)}, {t(7)}, 3, {t(8)}",
          f"v_add_u32 {t(7)}, s5, {t(7)}", f"v_lshlrev_b32 {t(7)}, 2, {t(7)}", f"v_add_u32 v{vPB}, {FL_B}, {t(7)}"]
    cg += [f"v_and_b32 {t(0)}, 15, v0", f"v_lshlrev_b32 {t(0)}, 6, {t(0)}", f"s_lshl_b32 s5, s{sPR}, 1", f"v_add_u32 {t(0)}, s5, {t(0)}",
           f"v_cvt_f32_u32 {t(0)}, {t(0)}", f"v_mul_f32 {t(0)}, {hx(1.0 / 2048)}, {t(0)}", f"v_add_f32 {t(1)}, {hx(1.0 / 2048)}, {t(0)}",
           f"v_lshrrev_b32 {t(2)}, 4, v0", f"v_lshlrev_b32 {t(2)}, 2, {t(2)}", f"v_cvt_f32_u32 {t(2)}, {t(2)}", f"v_add_f32 {t(6)}, {hx(16.0)}, {t(2)}"]
    for e in range(2):
        for k in range(2):
            cg += [f"v_mul_f32 {t(3)}, {t(6) if k else t(2)}, {t(e)}"]
            for r in range(4):
                cg += [f"v_cos_f32 {t(4)}, {t(3)}", f"v_sin_f32 {t(5)}, {t(3)}"]
                if r < 3:
                    cg += [f"v_add_f32 {t(3)}, {t(3)}, {t(e)}"]
                for hf in range(2):
                    n = hf and (r & 1)
                    c, mc = (t(4), '-' + t(4)) if not n else ('-' + t(4), t(4))
                    s_, ms = (t(5), '-' + t(5)) if not n else ('-' + t(5), t(5))
                    b = vK + 32 * e + 16 * hf + 4 * k + r
                    cg += [f"v_cvt_pk_bf16_f32 v{b}, {c}, {ms}", f"v_cvt_pk_bf16_f32 v{b + 8}, {s_}, {c}"]
    vLA, vGAo, vXI, vPW = vT + 8, vT + 12, vT + 16, vT + 11
    cg += [f"v_and_b32 {t(0)}, 15, v0", f"v_mul_u32_u24 {t(0)}, {RS}, {t(0)}", f"v_lshrrev_b32 {t(1)}, 4, v0",
           f"v_lshl_add_u32 {t(0)}, {t(1)}, 4, {t(0)}", f"s_mul_i32 s5, s{sW}, {64 * RS}", f"v_add_u32 v{vPW}, s5, {t(0)}",
           f"s_lshl_b32 s5, s{sW}, 6", f"v_add_u32 {t(1)}, s5, v0",
           f"s_mul_i32 s6, s{sNB}, 160", f"s_mul_i32 s7, s{sPR}, 2560", f"s_add_u32 s6, s6, s7"]
    for it in range(3):
        cg += [f"v_add_u32 {t(2)}, {256 * it}, {t(1)}", f"v_mul_u32_u24 {t(3)}, 6554, {t(2)}", f"v_lshrrev_b32 {t(3)}, 16, {t(3)}",
               f"v_mul_u32_u24 {t(4)}, 10, {t(3)}", f"v_sub_u32 {t(4)}, {t(2)}, {t(4)}",
               f"v_mul_u32_u24 {t(5)}, {RS}, {t(3)}", f"v_lshl_add_u32 v{vLA + it}, {t(4)}, 5, {t(5)}",
               f"v_and_b32 {t(5)}, 31, {t(3)}", f"v_lshlrev_b32 {t(5)}, 6, {t(5)}", f"v_lshrrev_b32 {t(6)}, 5, {t(3)}",
               f"v_add_u32 {t(5)}, {t(5)}, {t(6)}", f"v_mul_u32_u24 {t(5)}, 1280, {t(5)}",
               f"v_lshl_add_u32 {t(5)}, {t(4)}, 4, {t(5)}", f"v_add_u32 v{vGAo + it}, s6, {t(5)}"]
    cg += [f"s_cmp_ge_u32 s{sW}, 2\ns_cselect_b32 s5, {OOB}, 0", f"v_or_b32 v{vGAo + 2}, s5, v{vGAo + 2}"]
    xl = [(f"buffer_load_dwordx4 {vr(vXI + 4 * it)}, v{vGAo + it}, {sr(SX)}, 0 offen", None) for it in range(3)]

    def main_mfma(u, bsrc, first):
        L = []
        for st in range(4):
            for dt in range(5):
                acc = ar(4 * (4 * dt + st))
                c = "0" if first else acc
                L.append(f"v_mfma_f32_16x16x32_bf16 {acc}, {wreg(u, dt)}, {bsrc(st)}, {c}")
        return L

    groups = []
    for u in range(2, 17):
        if u >= max(NPRE, 2):
            groups.append(('w', u, u - 3))
        if u >= 3:
            groups.append(('h', u, u - 4))
    plan = {u: [] for u in range(17)}
    done = 0.0
    for u in range(16):
        done += OPT['quota'] / 2.0 if u < NG else 9
        while groups:
            ok = [g for g in groups if g[2] <= u]
            must = [g for g in groups if g[1] <= u + 1]
            g = must[0] if must else (ok[0] if ok else None)
            if g is None:
                break
            n = 5 if g[0] == 'w' else 4
            if not must and done < n - 1.5:
                break
            assert g[2] <= u
            groups.remove(g)
            plan[u].append(g)
            done -= n
    assert not groups
    if OPT.get('show'):
        print({u: [g[0] + str(g[1]) for g in v] for u, v in plan.items()}, file=sys.stderr)
    uFH = min(u for u in plan if ('h', 8, 4) in plan[u])
    uFB = min(u for u in plan if ('h', 12, 8) in plan[u])

    def fills(u):
        return [x for g in plan[u] for x in (w_loads(g[1]) if g[0] == 'w' else h_loads(g[1]))]

    per = (len(cg) + 9) // 10
    for u in range(NG):
        if u in (4, 8):
            stamp(p, "p3")
        if u == uFH:
            poll_check(vFH2, f"v{vPH}", SWS, 0, 2)
        if u == uFB:
            poll_check(vFB1, f"v{vPB}", SWS, 0, 1)
        fill = fills(u)
        extra = cg[(u - 1) * per:u * per] if 1 <= u <= 10 else []
        for n, m in enumerate(main_mfma(u, lambda st: hreg(u, st), u == 0)):
            p(m)
            if n % 2 == 0 and fill:
                emit(take(fill))
            else:
                for x in extra[:2]:
                    p(x)
                extra = extra[2:]
        emit(fill)
        for x in extra:
            p(x)
        if u == 1:
            p.wait_tag('U')
            p(f"buffer_store_dword v{vONE}, v{vFLB}, {sr(SWS)}, 0 offen sc1")
        if u == uFH - 2:
            poll_issue(vFH2, f"v{vPH}", SWS, 0)
        if u == uFB - 2:
            poll_issue(vFB1, f"v{vPB}", SWS, 0)
    stamp(p, "p3")

    def inv_unit(u, fill):
        L = []
        for k in range(2):
            for st in range(4):
                e, hf = st >> 1, st & 1
                for part in range(2):
                    d = vr(vZ + 8 * st + 4 * part)
                    c = "0" if k == 0 else d
                    L.append(f"v_mfma_f32_16x16x32_bf16 {d}, {hreg(u, 2 * e + k)}, {vr(vK + 32 * e + 16 * hf + 8 * part + 4 * k)}, {c}")
        fill = list(fill)
        for n, m in enumerate(L):
            p(m)
            if n % 3 == 0:
                emit(take(fill))
        for st in range(4):
            for r in range(4):
                p(f"v_cvt_pk_bf16_f32 v{vZP + 4 * st + r}, v{vZ + 8 * st + r}, v{vZ + 8 * st + 4 + r}")
        weave(main_mfma(u, lambda st: vr(vZP + 4 * st), False), fill, 0, 3)

    for u in range(NG, 17):
        if u == 16:
            p(f"s_cmp_lg_u32 s{sW}, 0\ns_cbranch_scc1 L_nold")
            p.opt_begin()
            emit(h_loads(17) + w_loads(17))
            p.opt_end()
            p("L_nold:")
        inv_unit(u, fills(u) + (xl if u == 15 else []))
    p(f"s_cmp_lg_u32 s{sW}, 0\ns_cbranch_scc1 L_nou")
    p.opt_begin()
    inv_unit(17, [])
    p.opt_end()
    p("L_nou:")
    stamp(p, "p3")
    stamp(p)

    for st in range(4):
        for dt in range(5):
            p(f"ds_write_b128 v{vPW}, {ar(4 * (4 * dt + st))} offset:{st * 16 * RS + dt * 64}")
    p.wait_lds()
    p("s_barrier")
    stamp(p, "p3")

    def fin_reads(it):
        b = 60 + 32 * it
        for w in range(4):
            for hh in range(2):
                p(f"ds_read_b128 {vr(b + 8 * w + 4 * hh)}, v{vLA + it} offset:{w * 64 * RS + 16 * hh}")

    def fin(it):
        b = 60 + 32 * it
        o = 160 + 8 * it
        for j in range(4):
            p(f"v_lshlrev_b32 v{o + 2 * j}, 16, v{vXI + 4 * it + j}\nv_and_b32 v{o + 2 * j + 1}, 0xffff0000, v{vXI + 4 * it + j}")
        for w in range(4):
            for j in range(0, 8, 2):
                p(f"v_pk_add_f32 {vr(o + j, 2)}, {vr(o + j, 2)}, {vr(b + 8 * w + j, 2)}")
        for j in range(4):
            p(f"v_cvt_pk_bf16_f32 v{b + j}, v{o + 2 * j}, v{o + 2 * j + 1}")
        p(f"buffer_store_dwordx4 {vr(b)}, v{vGAo + it}, {sr(SO)}, 0 offen {OPT['outf']}")

    fin_reads(0)
    fin_reads(1)
    fin(0)
    p(f"s_cmp_ge_u32 s{sW}, 2\ns_cbranch_scc1 L_nof0")
    p.opt_begin()
    fin_reads(2)
    p.opt_end()
    p("L_nof0:")
    fin(1)
    p(f"s_cmp_ge_u32 s{sW}, 2\ns_cbranch_scc1 L_nof")
    p.opt_begin()
    fin(2)
    p.opt_end()
    p("L_nof:")
    stamp_flush(p)
    p(f"{end}:")
    p("s_endpgm")


def build():
    name = NAME + "_kernel"
    out = [f"; @launch grid=(256,1,1) block=(256,1,1) lds={LDSB}",
           '.amdgcn_target "amdgcn-amd-amdhsa--gfx950"\n.text',
           f".globl {name}\n.p2align 8\n.type {name},@function\n{name}:"]
    p = Prog()
    kernel(p)
    out.append(p.text())
    out.append(f""".section .rodata,"a"
.p2align 6
.amdhsa_kernel {name}
  .amdhsa_next_free_vgpr 512
  .amdhsa_next_free_sgpr 102
  .amdhsa_accum_offset 256
  .amdhsa_group_segment_fixed_size 0
  .amdhsa_kernarg_size 80
  .amdhsa_user_sgpr_count 2
  .amdhsa_user_sgpr_kernarg_segment_ptr 1
  .amdhsa_system_sgpr_workgroup_id_x 1
.end_amdhsa_kernel
""")
    return "\n".join(out)


if __name__ == "__main__":
    dst = sys.argv[1] if len(sys.argv) > 1 else f"cdna_kernels/{NAME}.s"
    for a in sys.argv[2:]:
        if a == "stamps":
            STAMPS = True
        elif a.startswith("zoom="):
            ZOOM = a[5:]
        else:
            k, v = a.split("=")
            OPT[k] = int(v) if v.lstrip('-').isdigit() else v.replace('+', ' ')
    open(dst, "w").write(build())
```

```python
import struct, sys
from asmlib import Prog

NAME = "parallel_sum__spectral_gfnet__glu_gated_reglu__prompt"
S, D, F, NT = 2048, 640, 1536, 21

WS_T, WS_U, WS_H, WS_WD, WS_IT = 0, 0x300000, 0x600000, 0xC00000, 0xE00000
WS_FL = 0xF80000
FL_A, FL_H, FL_B = WS_FL, WS_FL + 1024, WS_FL + 5120
OOB = 0x7FFFFF00
SPIN_MAX = 1 << 20

OPT = dict(pf_code=1, pf_x=1, pf_w=1, pf_f=1, dpre=1, quota=15, outf='', xo=1)


def f2u(x):
    return struct.unpack('<I', struct.pack('<f', x))[0]


def hx(x):
    return hex(f2u(x))


def vr(i, n=4): return f"v[{i}:{i + n - 1}]"
def ar(i, n=4): return f"a[{i}:{i + n - 1}]"
def sr(i, n=4): return f"s[{i}:{i + n - 1}]"


SX, SG, SU, SD, SWS, SO, SWR, SWI = 28, 32, 36, 40, 44, 48, 52, 56
SDBG = 8
sW = 60

STAMPS = False
ZOOM = ""
WS_ST = 0xF00000
_nst = [0]
STAMP_BASE = 84


def stamp(p, grp=""):
    if STAMPS and grp in (ZOOM, "*"):
        i = _nst[0]
        assert i < 9
        p(f"s_memrealtime s[{STAMP_BASE + 2 * i}:{STAMP_BASE + 1 + 2 * i}]")
        _nst[0] += 1


def stamp_flush(p):
    if STAMPS:
        p.wait_all_vm()
        stamp(p, "*")
        p("s_waitcnt lgkmcnt(0)")
        n = _nst[0]
        p(f"s_lshl_b32 s3, s2, 2\ns_add_u32 s3, s3, s{sW}\ns_lshl_b32 s3, s3, 6\ns_add_u32 s3, s3, {WS_ST}")
        p("v_mov_b32 v1, 0")
        for i in range(n):
            p(f"v_mov_b32 v2, s{STAMP_BASE + 2 * i}")
            p(f"buffer_store_dword v2, v1, {sr(SWS)}, s3 offen offset:{4 * i}")
        if OPT.get('dbg'):
            p(f"v_cmp_eq_u32 vcc, 0, v0\ns_cmp_eq_u32 s{sW}, 0\ns_cselect_b32 s5, 0, 512\nv_mov_b32 v3, 512\nv_mov_b32 v4, s5\nv_cndmask_b32 v1, v3, v4, vcc")
            p(f"s_not_b32 s5, s{STAMP_BASE}\nv_mov_b32 v2, s5\nbuffer_atomic_umax v2, v1, {sr(SDBG)}, 0 offen offset:4 sc1")
            for i in range(n):
                p(f"v_mov_b32 v{5 + i}, s{STAMP_BASE + 2 * i}")
                p(f"buffer_atomic_umax v{5 + i}, v1, {sr(SDBG)}, 0 offen offset:{8 + 4 * i} sc1")
        _nst[0] = 0


TAB, XS, RING, MISC = 0, 40960, 90112, 155648
EX0, EX1 = RING + 6 * 8192, RING + 7 * 8192
P2C = TAB + 20480
P2X = RING
CSX = MISC
LDSB = 163840
RS = 336


def kernel(p):
    end = "L_end"
    sRB, sCB, sS2, sT0, sT1, sFA, sFB = 61, 62, 63, 64, 65, 66, 67
    sA, sB, sM0X, sM0R, sONE, sHA, sHB = 68, 69, 70, 71, 72, 73, 74
    sT32, sC5, sJOB, sSPIN = 75, 76, 77, 78
    sPR, sNB = 79, 80
    sQ, sT2, sK1 = 81, 82, 83
    sWD, sa, sa4 = 16, 17, 18
    sH0, sU0, sIT, sb0, sb1 = 19, 20, 21, 22, 23
    vWDG = vTWO = 1
    vXG = 2
    vXR = 6
    vL16 = 10
    vGA, vGB = 11, 12
    vRA, vRB = 13, 14
    vCA, vCB_ = 15, 16
    vSUM, vSQ = 17, 18
    vFLA = 19
    vNM, vR2, vSGN = 20, 22, 24
    vDC, vEXW, vTST = 21, 23, 25
    vHST, vSTA = 26, 27
    vT = 28
    vC1 = 60
    vXT = 76
    vTB = 108
    vACC = 124
    vFR = 188
    vCF = 220
    vCS = 228
    vIND = 232
    vRR = 236
    vFLH, vONE, vOOB, vPF = 252, 253, 254, 255
    vWR, vWI, vIN, vIN2 = vRR, vC1, vXT, vXT + 16
    t = lambda i: f"v{vT + i}"

    def emit(L):
        for text, tag in L:
            p(text, tag=tag)

    def junk_load(vaddr, srd, soff="0"):
        p(f"buffer_load_dword v{vPF}, {vaddr}, {sr(srd)}, {soff} offen", tag='pf', junk=True)

    p.reset()
    p(f"s_cmp_ge_u32 s2, 256\ns_cbranch_scc1 {end}")
    stamp(p, "*")
    if OPT.get('x_delay_start'):
        p(f"s_mov_b32 s5, {OPT['x_delay_start']}\nL_dly0:\nv_add_f32 v1, v1, v1\nv_add_f32 v1, v1, v1\nv_add_f32 v1, v1, v1\nv_add_f32 v1, v1, v1\ns_sub_u32 s5, s5, 1\ns_cmp_lg_u32 s5, 0\ns_cbranch_scc1 L_dly0")
    p("s_load_dwordx16 s[8:23], s[0:1], 0")
    p("s_load_dwordx4 s[24:27], s[0:1], 64")
    p("v_lshrrev_b32 v1, 6, v0")
    p("v_and_b32 v0, 63, v0")
    p(f"v_readfirstlane_b32 s{sW}, v1")
    p(f"v_mov_b32 v{vOOB}, {OOB}\nv_mov_b32 v{vONE}, 1")
    p(f"s_and_b32 s{sQ}, s2, 7\ns_lshr_b32 s4, s2, 3")
    if OPT['pf_code']:
        p(f"s_getpc_b64 {sr(SO, 2)}\nL_pc:\ns_mov_b32 s{SO + 2}, L_end-L_pc\ns_mov_b32 s{SO + 3}, 0x20000")
        p(f"s_lshl_b32 s5, s4, 2\ns_add_u32 s5, s5, s{sW}\ns_mul_i32 s5, s5, 384")
        p(f"v_cmp_gt_u32 vcc, 3, v0\nv_lshl_add_u32 {t(6)}, v0, 7, s5\nv_cndmask_b32 {t(6)}, v{vOOB}, {t(6)}, vcc")
        junk_load(t(6), SO)
    p(f"s_and_b32 s5, s{sQ}, 3\ns_lshl_b32 s5, s5, 2\ns_and_b32 s6, s4, 3\ns_add_u32 s{sRB}, s5, s6")
    p(f"s_lshr_b32 s5, s{sQ}, 2\ns_lshl_b32 s5, s5, 3\ns_lshr_b32 s6, s4, 2\ns_add_u32 s{sCB}, s5, s6")
    p(f"s_lshl_b32 s{sS2}, s{sRB}, 2\ns_add_u32 s{sS2}, s{sS2}, s{sW}")
    p(f"s_lshl_b32 s3, s2, 2\ns_add_u32 s3, s3, s{sW}")
    p(f"v_lshlrev_b32 v{vL16}, 4, v0")
    vXP, vWPF = vT + 31, vCS
    p(f"v_mul_u32_u24 {t(5)}, 26, v0\nv_lshrrev_b32 {t(5)}, 8, {t(5)}\nv_mul_u32_u24 {t(6)}, 10, {t(5)}\nv_sub_u32 {t(6)}, v0, {t(6)}")
    p(f"s_and_b32 s5, s{sCB}, 7\ns_lshl_b32 s5, s5, 8\ns_add_u32 s5, s5, s{sS2}\nv_lshl_add_u32 {t(5)}, {t(5)}, 6, s5")
    p(f"v_mul_u32_u24 {t(5)}, 1280, {t(5)}\nv_cmp_gt_u32 vcc, 40, v0\nv_lshl_add_u32 {t(5)}, {t(6)}, 7, {t(5)}")
    p(f"v_cndmask_b32 v{vXP}, v{vOOB}, {t(5)}, vcc")

    p(f"s_mul_i32 s5, s3, {15 * 128}\nv_cmp_gt_u32 vcc, 15, v0\nv_lshl_add_u32 {t(5)}, v0, 7, s5\nv_cndmask_b32 v{vWPF}, v{vOOB}, {t(5)}, vcc")
    for srd, src, size in ((SX, 8, S * D * 2), (SG, 16, D * F * 2), (SU, 18, D * F * 2), (SWS, 26, 0x10000000), (SD, 20, D * F * 2),
                           (SO, 22, S * D * 2), (SWR, 10, S * 321 * 2), (SWI, 12, S * 321 * 2), (SDBG, 24, 256)):
        p(f"s_mov_b32 s{srd}, s{src}\ns_mov_b32 s{srd + 1}, s{src + 1}\ns_mov_b32 s{srd + 2}, {size}\ns_mov_b32 s{srd + 3}, 0x20000")
        if srd == SX and OPT['pf_x']:
            junk_load(f"v{vXP}", SX)
        if srd in (SG, SU) and OPT['pf_w'] == 1:
            junk_load(f"v{vWPF}", srd)
    stamp(p, "pro")

    p(f"s_lshr_b32 s5, s{sQ}, 1\ns_lshl_b32 s5, s5, 3\ns_and_b32 s6, s4, 7\ns_add_u32 s{sPR}, s5, s6")
    p(f"s_and_b32 s5, s{sQ}, 1\ns_lshl_b32 s5, s5, 2\ns_lshr_b32 s6, s4, 3\ns_add_u32 s{sNB}, s5, s6")
    p(f"s_mov_b32 s{sT0}, s{sCB}")
    p(f"s_and_b32 s7, s{sRB}, 1\ns_lshl_b32 s7, s7, 3\ns_xor_b32 s7, s7, s{sCB}")
    p(f"s_lshr_b32 s5, s7, 2\ns_add_u32 s5, s5, 16\ns_and_b32 s6, s7, 3\ns_cmp_eq_u32 s6, 0")
    p(f"s_cselect_b32 s{sT1}, s5, 0\ns_cmp_eq_u32 s7, 1\ns_cselect_b32 s{sT1}, 20, s{sT1}")
    masks = []
    for g in range(2):
        m = 0
        for j in range(32):
            if ((8 * g + (j >> 2)) ^ (8 * (j & 1))) not in (0, 1, 4, 8, 12):
                m |= 1 << j
        assert bin(m).count('1') == 22
        masks.append(m)
    p(f"s_mov_b32 s5, {masks[0]}\ns_cmp_lt_u32 s{sQ}, 4\ns_cselect_b32 s5, s5, {masks[1]}")
    p(f"s_bfm_b32 s6, s4, 0\ns_and_b32 s5, s5, s6\ns_bcnt1_i32_b32 s{sT2}, s5")
    p(f"s_cmp_lg_u32 s{sT1}, 0\ns_cselect_b32 s{sJOB}, 31, s{sT2}")
    p(f"s_lshl_b32 s{sK1}, s{sQ}, 2\ns_add_u32 s{sK1}, s{sK1}, s{sW}")
    p(f"s_mul_i32 s5, s{sCB}, 96\ns_and_b32 s6, s{sCB}, 1\ns_lshl_b32 s7, s6, 5\ns_add_u32 s{sFA}, s5, s7")
    p(f"s_xor_b32 s6, s6, 1\ns_lshl_b32 s6, s6, 6\ns_add_u32 s{sFB}, s5, s6")
    p(f"s_mov_b32 s{sONE}, 0x3f803f80")
    p(f"s_mul_hi_u32 s{sT32}, s2, {(2**32 + 4) // 5}\ns_mul_i32 s5, s{sT32}, 5\ns_sub_u32 s{sC5}, s2, s5")
    p(f"s_mul_i32 s{sM0X}, s{sW}, 12288\ns_add_u32 s{sM0X}, s{sM0X}, {XS}")
    p(f"s_lshl_b32 s{sM0R}, s{sW}, 11\ns_add_u32 s{sM0R}, s{sM0R}, {RING}")

    p(f"v_lshrrev_b32 {t(0)}, 3, v0\nv_lshlrev_b32 {t(0)}, 6, {t(0)}\nv_add_u32 {t(0)}, s{sS2}, {t(0)}")
    p(f"v_mul_u32_u24 {t(0)}, 1280, {t(0)}")
    p(f"v_and_b32 {t(1)}, 7, v0\nv_lshrrev_b32 {t(2)}, 4, v0\nv_xor_b32 {t(3)}, {t(1)}, {t(2)}\nv_xor_b32 {t(4)}, 4, {t(3)}")
    for i in range(4):
        p(f"v_lshl_add_u32 v{vXG + i}, {t(3 + (i & 1))}, 4, {t(0)}")
        if i:
            p(f"v_add_u32 v{vXG + i}, {i * 655360 - i * 1024}, v{vXG + i}")
    p(f"v_and_b32 {t(0)}, 31, v0\nv_lshrrev_b32 {t(1)}, 5, v0")
    p(f"v_lshrrev_b32 {t(2)}, 1, {t(0)}\nv_and_b32 {t(2)}, 7, {t(2)}\nv_xor_b32 {t(2)}, {t(2)}, {t(1)}")
    p(f"v_lshlrev_b32 {t(3)}, 7, {t(0)}\nv_add_u32 {t(3)}, s{sM0X}, {t(3)}")
    for tt in range(4):
        p(f"v_xor_b32 {t(4)}, {2 * tt}, {t(2)}")
        p(f"v_lshl_add_u32 v{vXR + tt}, {t(4)}, 4, {t(3)}")
    p(f"v_lshrrev_b32 {t(7)}, 2, v0\ns_lshl_b32 s5, s{sT32}, 5\nv_add_u32 {t(7)}, s5, {t(7)}\nv_mul_u32_u24 {t(7)}, 1280, {t(7)}")
    p(f"v_and_b32 {t(6)}, 3, v0\nv_lshl_add_u32 {t(7)}, {t(6)}, 4, {t(7)}\ns_lshl_b32 s5, s{sC5}, 8\ns_lshl_b32 s6, s{sW}, 6\ns_add_u32 s5, s5, s6")
    p(f"v_add_u32 v{vWDG}, s5, {t(7)}")

    def x_dma(sl, part=(0, 1, 2, 3), head=True):
        if head:
            p(f"s_add_u32 m0, s{sM0X}, {(sl % 3) * 4096}")
            p(f"s_movk_i32 s{sA}, {sl * 128}")
        for i in part:
            p(f"buffer_load_dwordx4 v{vXG + i}, {sr(SX)}, s{sA} offen offset:{i * 1024} lds", tag=('x', sl))

    if OPT['xo'] == 0:
        x_dma(0)
    stamp(p, "pro")

    def gen_table(sT, base):
        p(f"v_and_b32 {t(0)}, 15, v0\ns_lshl_b32 s5, s{sT}, 4\nv_add_u32 {t(0)}, s5, {t(0)}")
        p(f"v_cmp_ge_u32 vcc, 320, {t(0)}\nv_cvt_f32_u32 {t(1)}, {t(0)}\nv_mul_f32 {t(1)}, {hx(1.0 / 640)}, {t(1)}")
        p(f"v_cndmask_b32 {t(6)}, 0, 1.0, vcc\nv_cos_f32 {t(8)}, {t(1)}")
        p(f"v_lshrrev_b32 {t(2)}, 5, v0\nv_lshlrev_b32 {t(2)}, 3, {t(2)}\ns_mul_i32 s5, s{sW}, 80\nv_add_u32 {t(2)}, s5, {t(2)}")
        p(f"v_mul_u32_u24 {t(2)}, {t(2)}, {t(0)}\nv_cvt_f32_u32 {t(2)}, {t(2)}\nv_mul_f32 {t(2)}, {hx(1.0 / 640)}, {t(2)}")
        p(f"v_fract_f32 {t(2)}, {t(2)}\nv_add_f32 {t(8)}, {t(8)}, {t(8)}")
        p(f"v_bfe_u32 {t(3)}, v0, 4, 1\nv_cvt_f32_u32 {t(3)}, {t(3)}\nv_fmac_f32 {t(2)}, {hx(0.25)}, {t(3)}")
        p(f"v_mul_f32 {t(4)}, {hx(16.0)}, {t(1)}\nv_fract_f32 {t(4)}, {t(4)}")
        p(f"s_mul_i32 s5, s{sW}, 5120\nv_add_u32 {t(7)}, s5, v{vL16}")
        c = lambda tt, j: f"v{vACC + 8 * tt + j}"
        for tt in range(5):
            p(f"v_add_f32 {c(tt, 1)}, {t(2)}, {t(1)}\nv_cos_f32 {c(tt, 0)}, {t(2)}\nv_cos_f32 {c(tt, 1)}, {c(tt, 1)}")
            if tt < 4:
                p(f"v_add_f32 {t(2)}, {t(2)}, {t(4)}")
        for tt in range(5):
            p(f"v_pk_mul_f32 {vr(vACC + 8 * tt, 2)}, {vr(vACC + 8 * tt, 2)}, {vr(vT + 6, 2)} op_sel_hi:[1,0]")
        for j in range(2, 8):
            for tt in range(5):
                p(f"v_fma_f32 {c(tt, j)}, {t(8)}, {c(tt, j - 1)}, -{c(tt, j - 2)}")
        for tt in range(5):
            a = vXT + 4 * tt
            for j in range(4):
                p(f"v_cvt_pk_bf16_f32 v{a + j}, {c(tt, 2 * j)}, {c(tt, 2 * j + 1)}")
            p(f"ds_write_b128 {t(7)}, {vr(a)} offset:{base + tt * 1024}")

    gen_table(sT0, TAB)
    stamp(p, "pro")
    p(f"s_cmp_eq_u32 s{sT1}, 0\ns_cbranch_scc1 L_notab1")
    r1 = p.opt_begin()
    gen_table(sT1, TAB + 20480)
    p("s_branch L_tabs")
    p.opt_end()
    p("L_notab1:")
    p.opt_begin(excl=r1)
    p(f"v_and_b32 {t(2)}, 15, v0\nv_cvt_f32_u32 {t(3)}, {t(2)}\nv_mul_f32 {t(3)}, {hx(1.0 / 64)}, {t(3)}")
    p(f"v_lshrrev_b32 {t(0)}, 4, v0\nv_lshlrev_b32 {t(4)}, 2, {t(0)}\ns_lshl_b32 s5, s{sW}, 4\nv_add_u32 {t(4)}, s5, {t(4)}\nv_cvt_f32_u32 {t(4)}, {t(4)}")
    p(f"v_mul_f32 {t(8)}, {t(4)}, {t(3)}")
    for r in range(4):
        p(f"v_cos_f32 {t(10 + 2 * r)}, {t(8)}\nv_sin_f32 {t(11 + 2 * r)}, {t(8)}")
        if r < 3:
            p(f"v_add_f32 {t(8)}, {t(8)}, {t(3)}")
    p(f"s_lshl_b32 s5, s{sW}, 10\nv_add_u32 {t(7)}, s5, v{vL16}")
    for mt in range(4):
        for r in range(4):
            c, s_ = t(10 + 2 * r), t(11 + 2 * r)
            lo, hi = [(c, s_), ('-' + s_, c), ('-' + c, '-' + s_), (s_, '-' + c)][(mt * r) % 4]
            p(f"v_cvt_pk_bf16_f32 v{vXT + 4 * mt + r}, {lo}, {hi}")
        p(f"ds_write_b128 {t(7)}, {vr(vXT + 4 * mt)} offset:{P2C + mt * 4096}")
    p.opt_end()
    p("L_tabs:")
    stamp(p, "pro")
    p("s_cmp_lg_u32 s2, 0\ns_cbranch_scc1 L_noclr")
    p.opt_begin()
    for i in range(4):
        p(f"v_mov_b32 {t(24 + i)}, 0")
    p(f"s_lshl_b32 s5, s{sW}, 11\ns_add_u32 s5, s5, {WS_FL}")
    for i in range(2):
        p(f"buffer_store_dwordx4 {vr(vT + 24)}, v{vL16}, {sr(SWS)}, s5 offen offset:{i * 1024} sc1", tag='clr')
    p.opt_end()
    p("L_noclr:")

    p(f"v_and_b32 {t(0)}, 31, v0\nv_cvt_f32_u32 {t(1)}, {t(0)}\nv_mul_f32 {t(1)}, {hx(1.0 / 2048)}, {t(1)}")
    p(f"v_lshrrev_b32 {t(2)}, 5, v0\nv_lshlrev_b32 {t(2)}, 8, {t(2)}\nv_add_u32 {t(2)}, s{sS2}, {t(2)}\nv_cvt_f32_u32 {t(2)}, {t(2)}")
    p(f"v_mul_f32 {t(2)}, {t(2)}, {t(1)}\nv_mul_f32 {t(1)}, {hx(64.0)}, {t(1)}\nv_mul_f32 {t(4)}, {hx(5.0)}, {t(1)}")
    p(f"v_and_b32 {t(3)}, 1, v0\nv_mul_u32_u24 {t(3)}, 0x8000, {t(3)}\nv_lshl_or_b32 {t(3)}, {t(3)}, 16, {t(3)}")
    for j in range(8):
        p(f"v_cos_f32 {t(8 + j)}, {t(2)}\nv_sin_f32 {t(16 + j)}, {t(2)}")
        if j < 7:
            p(f"v_add_f32 {t(2)}, {t(2)}, {t(4) if j == 3 else t(1)}")
    for j in range(4):
        p(f"v_cvt_pk_bf16_f32 v{vC1 + j}, {t(8 + 2 * j)}, {t(9 + 2 * j)}")
        p(f"v_cvt_pk_bf16_f32 v{vC1 + 8 + j}, {t(16 + 2 * j)}, {t(17 + 2 * j)}")
    for j in range(4):
        p(f"v_xor_b32 v{vC1 + 4 + j}, {t(3)}, v{vC1 + j}")
        p(f"v_xor_b32 v{vC1 + 12 + j}, {t(3)}, v{vC1 + 8 + j}")
    x_dma(1 if OPT['xo'] == 0 else 0)
    stamp(p, "pro")

    p(f"v_lshrrev_b32 {t(0)}, 2, v0\nv_and_b32 {t(1)}, 7, {t(0)}")
    p(f"s_lshl_b32 s5, s{sW}, 3\nv_add_u32 {t(1)}, s5, {t(1)}\nv_mul_u32_u24 {t(1)}, 3072, {t(1)}")
    p(f"v_and_b32 {t(2)}, 3, v0\nv_lshlrev_b32 {t(2)}, 4, {t(2)}")
    p(f"v_lshrrev_b32 {t(3)}, 5, v0\nv_lshl_add_u32 {t(3)}, {t(3)}, 6, {t(2)}")
    p(f"s_lshl_b32 s5, s{sFA}, 1\nv_add3_u32 v{vGA}, {t(1)}, {t(3)}, s5")
    p(f"s_lshl_b32 s5, s{sW}, 4\nv_add_u32 {t(1)}, s5, {t(0)}\nv_mul_u32_u24 {t(1)}, 3072, {t(1)}")
    p(f"s_lshl_b32 s5, s{sFB}, 1\nv_add3_u32 v{vGB}, {t(1)}, {t(2)}, s5")
    p(f"v_and_b32 {t(0)}, 31, v0\nv_lshrrev_b32 {t(1)}, 5, v0")
    p(f"v_bfe_u32 {t(3)}, v0, 2, 2\nv_lshlrev_b32 {t(3)}, 6, {t(3)}")
    p(f"v_and_b32 {t(2)}, 3, v0\nv_lshl_add_u32 {t(3)}, {t(2)}, 3, {t(3)}")
    p(f"v_bfe_u32 {t(2)}, v0, 4, 1\nv_lshl_add_u32 {t(3)}, {t(2)}, 5, {t(3)}")
    p(f"v_add_u32 {t(3)}, {RING}, {t(3)}")
    p(f"v_lshl_add_u32 v{vRA}, {t(1)}, 11, {t(3)}")
    p(f"v_lshl_add_u32 v{vRB}, {t(1)}, 9, {t(3)}")
    p(f"s_lshl_b32 s5, s{sW}, 9\nv_add_u32 v{vCA}, s5, v{vRA}")
    p(f"s_and_b32 s5, s{sW}, 1\ns_lshl_b32 s5, s5, 10\ns_lshr_b32 s6, s{sW}, 1\ns_lshl_b32 s6, s6, 11\ns_add_u32 s5, s5, s6")
    p(f"v_add_u32 v{vCB_}, s5, v{vRB}")
    p(f"v_and_b32 {t(2)}, 15, v0\nv_bfe_u32 {t(3)}, v0, 4, 1\nv_cmp_eq_u32 vcc, {t(2)}, {t(3)}")
    p(f"v_mov_b32 {t(4)}, s{sONE}\nv_mov_b32 v{vSUM}, 0")
    p(f"v_cndmask_b32 v{vIND}, 0, {t(4)}, vcc")
    for i in range(1, 4):
        p(f"v_mov_b32 v{vIND + i}, v{vIND}")
    p(f"v_lshlrev_b32 {t(4)}, 2, {t(1)}\nv_add_u32 {t(4)}, {t(4)}, {t(3)}\nv_lshlrev_b32 {t(4)}, 8, {t(4)}")
    p(f"v_lshl_add_u32 {t(4)}, {t(2)}, 4, {t(4)}\ns_lshl_b32 s5, s{sW}, 2\ns_add_u32 s5, s5, {EX0}\nv_add_u32 v{vEXW}, s5, {t(4)}")
    p(f"v_lshrrev_b32 {t(4)}, 4, v0\ns_lshl_b32 s5, s{sW}, 3\nv_add_u32 {t(4)}, s5, {t(4)}")
    p(f"v_mul_u32_u24 {t(4)}, 86016, {t(4)}\nv_lshl_add_u32 v{vTST}, {t(2)}, 4, {t(4)}")
    p(f"v_lshlrev_b32 {t(4)}, 10, {t(3)}\nv_lshl_add_u32 {t(4)}, {t(1)}, 8, {t(4)}\nv_lshl_add_u32 v{vHST}, {t(2)}, 4, {t(4)}")
    p(f"s_mul_i32 s5, s{sS2}, 48\ns_lshr_b32 s6, s{sFA}, 5\ns_add_u32 s6, s6, s5\ns_lshl_b32 s6, s6, 11\ns_add_u32 s{sHA}, s6, {WS_H}")
    p(f"s_lshr_b32 s6, s{sFB}, 5\ns_add_u32 s6, s6, s5\ns_lshl_b32 s6, s6, 11\ns_add_u32 s{sHB}, s6, {WS_H}")
    p(f"v_cmp_eq_u32 vcc, 0, {t(0)}\nv_and_b32 {t(4)}, 1, v0\nv_lshlrev_b32 {t(4)}, 31, {t(4)}\nv_or_b32 v{vSGN}, 0x3f800000, {t(4)}")
    p(f"v_mov_b32 {t(4)}, {hx(-640.0)}\nv_cndmask_b32 v{vDC}, 0, {t(4)}, vcc")
    p(f"v_lshlrev_b32 {t(4)}, 4, {t(1)}\ns_add_u32 s5, s{sM0X}, 12032\nv_add_u32 v{vSTA}, s5, {t(4)}")
    p(f"s_lshl_b32 s5, s2, 2\ns_add_u32 s5, s5, {FL_A}\ns_cmp_eq_u32 s{sW}, 0\ns_cselect_b32 s5, s5, {OOB}")
    p(f"s_lshl_b32 s6, s{sS2}, 4\ns_add_u32 s6, s6, s{sCB}\ns_lshl_b32 s6, s6, 2\ns_add_u32 s6, s6, {FL_H}")
    p(f"v_cmp_eq_u32 vcc, 0, v0\nv_mov_b32 {t(4)}, s5\nv_mov_b32 {t(6)}, s6\nv_mov_b32 v{vSQ}, 0")
    p(f"v_cndmask_b32 v{vFLA}, v{vOOB}, {t(4)}, vcc\nv_cndmask_b32 v{vFLH}, v{vOOB}, {t(6)}, vcc")
    p(f"s_mul_i32 s5, s{sW}, 12\ns_mul_i32 s6, s{sPR}, 96\ns_add_u32 s6, s6, s5\ns_lshl_b32 s6, s6, 11\ns_add_u32 s{sH0}, s6, {WS_H}")
    p(f"s_mul_i32 s5, s5, 40\ns_mul_i32 s7, s{sNB}, 5\ns_add_u32 s5, s5, s7\ns_lshl_b32 s5, s5, 10\ns_add_u32 s{sWD}, s5, {WS_WD}")
    p(f"s_mul_i32 s5, s{sW}, 5\ns_add_u32 s5, s5, 1\ns_mul_i32 s6, s{sPR}, 42\ns_add_u32 s6, s6, s5\ns_lshl_b32 s6, s6, 11\ns_add_u32 s{sU0}, s6, {WS_U}")
    p(f"s_mul_i32 s5, s5, 40\ns_add_u32 s5, s5, s7\ns_lshl_b32 s5, s5, 10\ns_add_u32 s{sIT}, s5, {WS_IT}")
    if OPT['xo'] == 1:
        x_dma(1)
    stamp(p, "pro")

    vIT = vACC + 48
    p(f"s_mul_hi_u32 s5, s3, {(2**32 + 39) // 40}\ns_mul_i32 s6, s5, 40\ns_sub_u32 s6, s3, s6")
    p(f"v_and_b32 {t(0)}, 15, v0\ns_lshl_b32 s6, s6, 4\nv_add_u32 {t(0)}, s6, {t(0)}")
    p(f"v_lshrrev_b32 {t(1)}, 4, v0\nv_lshlrev_b32 {t(1)}, 2, {t(1)}\ns_lshl_b32 s5, s5, 4\nv_add_u32 {t(1)}, s5, {t(1)}")
    a1 = 1.0 / (S * D)
    p(f"v_cmp_gt_u32 vcc, 320, {t(1)}\nv_mov_b32 {t(2)}, {hx(2 * a1)}\nv_mov_b32 {t(3)}, {hx(a1)}")
    p(f"v_mul_u32_u24 {t(9)}, {t(1)}, {t(0)}\nv_cvt_f32_u32 {t(9)}, {t(9)}\nv_cndmask_b32 {t(8)}, 0, {t(2)}, vcc")
    p(f"v_cmp_eq_u32 vcc, 0, {t(1)}\nv_mul_f32 {t(9)}, {hx(1.0 / 640)}, {t(9)}\nv_fract_f32 {t(9)}, {t(9)}\nv_cndmask_b32 {t(4)}, {t(8)}, {t(3)}, vcc")
    p(f"v_cmp_eq_u32 vcc, 320, {t(1)}\nv_cvt_f32_u32 {t(0)}, {t(0)}\nv_mul_f32 {t(0)}, {hx(1.0 / 640)}, {t(0)}\nv_cndmask_b32 {t(4)}, {t(4)}, {t(3)}, vcc")
    for r in range(4):
        p(f"v_cos_f32 {t(10 + 2 * r)}, {t(9)}\nv_sin_f32 {t(11 + 2 * r)}, {t(9)}")
        if r < 3:
            p(f"v_add_f32 {t(9)}, {t(9)}, {t(0)}")
    for r in range(4):
        am = vT + (8 if r else 4)
        p(f"v_pk_mul_f32 {vr(vT + 10 + 2 * r, 2)}, {vr(vT + 10 + 2 * r, 2)}, {vr(am, 2)} op_sel_hi:[1,0]")
    for r in range(4):
        p(f"v_cvt_pk_bf16_f32 v{vIT + r}, {t(10 + 2 * r)}, -{t(11 + 2 * r)}")
    x_dma(2)
    stamp(p, "pro")
    stamp(p)
    p("s_cmp_lg_u32 s2, 0\ns_cbranch_scc1 L_noclr2")
    p.opt_begin()
    p.wait_tag('clr')
    p.opt_end()
    p("L_noclr2:")
    p.wait_lds()
    p("s_barrier")
    p(f"s_cmp_lg_u32 s3, 0\ns_cbranch_scc1 L_nogo")
    p.opt_begin()
    p(f"v_mov_b32 {t(0)}, 0\nbuffer_store_dword v{vONE}, {t(0)}, {sr(SDBG)}, 0 offen sc1")
    p.opt_end()
    p("L_nogo:")

    npoll = [0]

    def poll_issue(dst, vaddr, srd, soff, x4=False):
        op, d = ("buffer_load_dwordx4", vr(dst)) if x4 else ("buffer_load_dword", f"v{dst}")
        p(f"{op} {d}, {vaddr}, {sr(srd)}, {soff} offen sc1")

    def poll_check(dst, vaddr, srd, soff, thr, x4=False):
        n = npoll[0]
        npoll[0] += 1
        assert p._opt is None

        def test():
            if x4:
                p(f"v_min3_u32 v{dst}, v{dst}, v{dst + 1}, v{dst + 2}\nv_min_u32 v{dst}, v{dst}, v{dst + 3}")
            p(f"v_cmp_le_u32 vcc, {thr}, v{dst}\ns_nop 0\ns_cmp_eq_u64 vcc, exec")

        test()
        p(f"s_cbranch_scc1 L_ok{n}")
        p.opt_begin()
        p(f"s_mov_b32 s{sSPIN}, {SPIN_MAX}")
        p(f"L_spin{n}:")
        p("s_sleep 1")
        poll_issue(dst, vaddr, srd, soff, x4)
        p("s_waitcnt vmcnt(0)")
        test()
        p(f"s_cbranch_scc1 L_ok{n}")
        p(f"s_sub_u32 s{sSPIN}, s{sSPIN}, 1\ns_cmp_lg_u32 s{sSPIN}, 0\ns_cbranch_scc1 L_spin{n}")
        p.opt_end()
        p(f"L_ok{n}:")

    def ring_piece(st, mat):
        if st >= 30:
            return []
        slot = (st % 8) * 8192
        va, off = (vGA, st * 98304) if st < 20 else (vGB, (st - 20) * 196608)
        L = []
        if mat == 0:
            L.append((f"s_mov_b32 s{sB}, {off}", None))
        L.append((f"s_add_u32 m0, s{sM0R}, {slot + 1024 * mat}", None))
        L.append((f"buffer_load_dwordx4 v{va}, {sr(SU if mat else SG)}, s{sB} offen lds", ('w', st)))
        return L

    def ring_dma(st):
        emit(ring_piece(st, 0) + ring_piece(st, 1))

    def touch(srd, nlines, tmp):
        p(f"s_mul_i32 s5, s3, {nlines * 128}\nv_cmp_gt_u32 vcc, {nlines}, v0\nv_lshl_add_u32 {tmp}, v0, 7, s5")
        p(f"v_cndmask_b32 {tmp}, v{vOOB}, {tmp}, vcc")
        junk_load(tmp, srd)

    A1, A2 = vACC, vACC + 16

    xbuf = lambda sl: (vXT, vXT + 16, vFR)[sl % 3]

    def x_reads(sl, part=(0, 1)):
        if 0 in part:
            for tt in range(4):
                p(f"ds_read_b128 {vr(xbuf(sl) + 4 * tt)}, v{vXR + tt} offset:{(sl % 3) * 4096}")
        if 1 in part:
            for tt in range(4):
                p(f"ds_read_b128 {ar(16 * sl + 4 * tt)}, v{vXR + tt} offset:{(sl % 3) * 4096}")

    def tab_read(k, base):
        p(f"ds_read_b128 {vr(vTB + 4 * (k % 4))}, v{vL16} offset:{base + (k % 20) * 1024}")

    def wd_dma():
        p(f"s_lshl_b32 s7, s{sW}, 11\ns_add_u32 m0, s7, {MISC}\ns_movk_i32 s6, {16 * 1280}")
        p(f"buffer_load_dwordx4 v{vWDG}, {sr(SD)}, 0 offen lds", tag='wd')
        p(f"s_add_u32 m0, s7, {MISC + 1024}")
        p(f"buffer_load_dwordx4 v{vWDG}, {sr(SD)}, s6 offen lds", tag='wd')

    def wd_job():
        p(f"v_lshrrev_b32 {t(16)}, 5, v0\nv_lshlrev_b32 {t(16)}, 4, {t(16)}\nv_bfe_u32 {t(17)}, v0, 4, 1\nv_lshl_add_u32 {t(16)}, {t(17)}, 2, {t(16)}")
        p(f"v_bfe_u32 {t(17)}, v0, 2, 2\nv_add_u32 {t(16)}, {t(16)}, {t(17)}\nv_lshlrev_b32 {t(16)}, 6, {t(16)}")
        p(f"v_and_b32 {t(17)}, 3, v0\nv_lshl_add_u32 {t(16)}, {t(17)}, 3, {t(16)}\ns_lshl_b32 s5, s{sW}, 11\ns_add_u32 s5, s5, {MISC}\nv_add_u32 {t(16)}, s5, {t(16)}")
        p.wait_tag('wd')
        for jt in range(2):
            for q in range(2):
                p(f"ds_read_b64_tr_b16 {vr(vXT + 4 * jt + 2 * q, 2)}, {t(16)} offset:{jt * 32 + q * 512}")
        p(f"s_mul_i32 s5, s{sT32}, 40\ns_lshl_b32 s6, s{sC5}, 3\ns_add_u32 s5, s5, s6\ns_lshl_b32 s6, s{sW}, 1\ns_add_u32 s5, s5, s6")
        p(f"s_lshl_b32 s5, s5, 10\ns_add_u32 s5, s5, {WS_WD}\ns_cmp_lt_u32 s2, 240\ns_cselect_b32 s5, s5, {OOB}")
        for jt in range(2):
            p(f"buffer_store_dwordx4 {vr(vXT + 4 * jt)}, v{vL16}, {sr(SWS)}, s5 offen offset:{jt * 1024} sc1", tag='p0')

    stamp(p, "p0")
    p.wait_tag(('x', 0))
    stamp(p, "p0")
    x_reads(0)
    for tt in range(4):
        tab_read(tt, TAB)
    p.wait_tag(('x', 1))
    p.wait_lds()
    x_reads(1)
    x_dma(3)
    for sl in range(10):
        xb = xbuf(sl)
        if sl in (1, 3, 5, 7, 9):
            stamp(p, "p0")
        for j in range(16):
            p(f"v_dot2c_f32_bf16 v{vSUM}, s{sONE}, v{xb + j}")
            p(f"v_dot2c_f32_bf16 v{vSQ}, v{xb + j}, v{xb + j}")
        p.wait_lds()

        def mf(tt):
            k = 4 * sl + tt
            acc = A1 if k < 20 else A2
            c = "0" if k in (0, 20) else vr(acc, 16)
            p(f"v_mfma_f32_32x32x16_bf16 {vr(acc, 16)}, {vr(xb + 4 * tt)}, {vr(vTB + 4 * tt)}, {c}")

        nop = lambda: None
        if sl + 4 < 10:
            side = [lambda: x_dma(sl + 4, (0, 1)), lambda: x_dma(sl + 4, (2, 3), False)]
        elif sl == 6:
            side = [wd_dma, nop]
            if OPT['pf_w'] == 2:
                side = [lambda: (junk_load(f"v{vWPF}", SG), junk_load(f"v{vWPF}", SU)), wd_dma]
        elif OPT['pf_w'] == 2:
            side = [nop, nop]
        else:
            st = 2 * (sl - 7)
            side = [lambda: ring_dma(st), lambda: ring_dma(st + 1)]
        mf(0)
        side[0]()
        mf(1)
        side[1]()
        if sl + 2 < 10:
            p.wait_tag(('x', sl + 2))
        mf(2)
        if sl + 2 < 10:
            x_reads(sl + 2, (0,))
        mf(3)
        if sl + 1 < 10:
            for tt in range(4):
                tab_read(4 * sl + 4 + tt, TAB)
        if sl + 2 < 10:
            x_reads(sl + 2, (1,))
        if sl == 6:
            p(f"s_lshl_b32 s5, s3, 10\ns_add_u32 s5, s5, {WS_IT}\ns_cmp_lt_u32 s3, 840\ns_cselect_b32 s5, s5, {OOB}")
            p(f"buffer_store_dwordx4 {vr(vIT)}, v{vL16}, {sr(SWS)}, s5 offen sc1", tag='p0')
            p(f"v_mov_b32 {t(30)}, 0")
            poll_issue(vT + 31, t(30), SDBG, 0)
    stamp(p)
    stamp(p, "p1")

    p(f"v_mov_b32 {t(0)}, v{vSUM}\nv_mov_b32 {t(1)}, v{vSQ}")
    p(f"v_permlane32_swap_b32 {t(0)}, v{vSUM}\nv_permlane32_swap_b32 {t(1)}, v{vSQ}")
    p(f"v_add_f32 {t(0)}, {t(0)}, v{vSUM}\nv_add_f32 {t(1)}, {t(1)}, v{vSQ}")
    p(f"v_mul_f32 {t(0)}, {hx(1.0 / 640)}, {t(0)}\nv_mul_f32 {t(1)}, {hx(1.0 / 640)}, {t(1)}")
    p(f"v_fma_f32 {t(1)}, -{t(0)}, {t(0)}, {t(1)}\nv_max_f32 {t(1)}, 0, {t(1)}")
    p(f"v_cvt_pk_bf16_f32 {t(2)}, {t(0)}, {t(1)}")
    p(f"v_lshlrev_b32 {t(0)}, 16, {t(2)}\nv_and_b32 {t(1)}, 0xffff0000, {t(2)}")
    p(f"v_add_f32 {t(1)}, {hx(1e-5)}, {t(1)}\nv_cvt_pk_bf16_f32 {t(1)}, {t(1)}, {t(1)}\nv_and_b32 {t(1)}, 0xffff0000, {t(1)}")
    p(f"v_sqrt_f32 {t(1)}, {t(1)}\nv_and_b32 {t(2)}, 31, v0\nv_cvt_pk_bf16_f32 {t(1)}, {t(1)}, {t(1)}\nv_and_b32 {t(1)}, 0xffff0000, {t(1)}")
    p(f"v_rcp_f32 {t(1)}, {t(1)}")
    p(f"v_lshlrev_b32 {t(2)}, 2, {t(2)}\ns_add_u32 s5, s{sM0X}, 12032\nv_add_u32 {t(2)}, s5, {t(2)}")
    p(f"ds_write2_b32 {t(2)}, {t(1)}, {t(0)} offset0:0 offset1:32")
    p(f"v_sub_f32 v{vNM}, 0, {t(0)}\nv_mul_f32 v{vR2}, {t(1)}, {t(1)}")
    p.wait_lds()
    for a in range(4):
        p(f"ds_read_b128 {vr(vRR + 4 * a)}, v{vSTA} offset:{32 * a}")

    def filter_touch():
        p(f"s_lshr_b32 s4, s2, 3\ns_lshl_b32 s4, s4, 2\ns_add_u32 s4, s4, s{sW}\ns_and_b32 s5, s4, 63\ns_lshl_b32 s5, s5, 3\ns_add_u32 s5, s5, s{sQ}")
        p(f"s_mul_i32 s5, s5, {4 * 642}\ns_and_b32 s5, s5, 0xffffff80\nv_cmp_gt_u32 vcc, 22, v0\nv_lshl_add_u32 {t(29)}, v0, 7, s5")
        p(f"s_cmp_lt_u32 s4, 64\ns_cselect_b32 s5, 0, {OOB}\ns_cselect_b32 s6, {OOB}, 0\nv_cndmask_b32 {t(29)}, v{vOOB}, {t(29)}, vcc")
        junk_load(t(29), SWR, "s5")
        junk_load(t(29), SWI, "s6")

    def dft_front(sT, ex, first):
        for i in range(0, 16, 2):
            p(f"v_pk_fma_f32 {vr(A1 + i, 2)}, {vr(A2 + i, 2)}, {vr(vSGN, 2)}, {vr(A1 + i, 2)} op_sel_hi:[1,0,1]")
        if first:
            if OPT['pf_f'] == 2:
                filter_touch()
            p(f"s_cmp_lg_u32 s{sT}, 0\ns_cbranch_scc1 L_nodc")
            p.opt_begin()
            for a in range(4):
                p(f"ds_read_b128 {vr(vT + 4 * a)}, v{vSTA} offset:{128 + 32 * a}")
            for i in range(16):
                p(f"v_fmac_f32 v{A1 + i}, v{vDC}, {t(i)}")
            p.opt_end()
            p("L_nodc:")
        for i in range(0, 16, 2):
            p(f"v_pk_mul_f32 {vr(A1 + i, 2)}, {vr(A1 + i, 2)}, {vr(vRR + i, 2)}")
        for j in range(8):
            p(f"v_cvt_pk_bf16_f32 {t(j)}, v{A1 + 2 * j}, v{A1 + 2 * j + 1}")
        P_, Q_ = vACC + 32, vACC + 48
        p(f"v_mfma_f32_32x32x16_bf16 {vr(P_, 16)}, {vr(vC1)}, {vr(vT)}, 0")
        p(f"v_mfma_f32_32x32x16_bf16 {vr(P_, 16)}, {vr(vC1 + 4)}, {vr(vT + 4)}, {vr(P_, 16)}")
        p(f"v_mfma_f32_32x32x16_bf16 {vr(Q_, 16)}, {vr(vC1 + 8)}, {vr(vT)}, 0")
        p(f"v_mfma_f32_32x32x16_bf16 {vr(Q_, 16)}, {vr(vC1 + 12)}, {vr(vT + 4)}, {vr(Q_, 16)}")
        if first:
            if OPT['pf_w'] == 2:
                ring_dma(0)
                ring_dma(1)
            wd_job()
        for q in range(8):
            p(f"v_permlane16_swap_b32 v{P_ + 2 * q}, v{P_ + 2 * q + 1}")
        for q in range(8):
            p(f"v_permlane16_swap_b32 v{Q_ + 2 * q}, v{Q_ + 2 * q + 1}")
        for q in range(8):
            p(f"v_add_f32 v{P_ + 2 * q}, v{P_ + 2 * q}, v{Q_ + 2 * q + 1}")
            p(f"v_sub_f32 v{P_ + 2 * q + 1}, v{P_ + 2 * q + 1}, v{Q_ + 2 * q}")
            p(f"v_cvt_pk_bf16_f32 {t(8 + q)}, v{P_ + 2 * q}, v{P_ + 2 * q + 1}")
            p(f"ds_write_b32 v{vEXW}, {t(8 + q)} offset:{ex - EX0 + (8 * (q >> 1) + 2 * (q & 1)) * 256}")

    def dft_back(sT, ex):
        p(f"s_lshl_b32 s5, s{sW}, 11\ns_add_u32 s5, s5, {ex}\nv_add_u32 {t(16)}, s5, v{vL16}")
        for e in range(2):
            p(f"ds_read_b128 {vr(vT + 20 + 4 * e)}, {t(16)} offset:{e * 1024}")
        p(f"s_lshl_b32 s5, s{sT}, 4\ns_add_u32 s5, s5, s{sRB}\ns_lshl_b32 s5, s5, 8\ns_add_u32 s5, s5, {WS_T}")
        p(f"s_add_u32 s6, s5, {4 * 86016}")
        p(f"buffer_store_dwordx4 {vr(vT + 20)}, v{vTST}, {sr(SWS)}, s5 offen sc1", tag='p0')
        p(f"buffer_store_dwordx4 {vr(vT + 24)}, v{vTST}, {sr(SWS)}, s6 offen sc1", tag='p0')

    stamp(p, "p1")
    dft_front(sT0, EX0, True)
    stamp(p, "p1")
    if OPT['pf_w'] == 2:
        ring_dma(2)
        ring_dma(3)
    poll_check(vT + 31, t(30), SDBG, 0, 1)
    p.wait_lds()
    p("s_barrier")
    dft_back(sT0, EX0)
    if OPT['pf_w'] == 2:
        ring_dma(4)
        ring_dma(5)
    stamp(p, "p1")

    p(f"s_cmp_eq_u32 s{sT1}, 0\ns_cbranch_scc1 L_nou1")
    p.opt_begin()
    for k in range(3):
        tab_read(k, TAB + 20480)
    for k in range(40):
        acc = A1 if k < 20 else A2
        c = "0" if k in (0, 20) else vr(acc, 16)
        p(f"v_mfma_f32_32x32x16_bf16 {vr(acc, 16)}, {ar(4 * k)}, {vr(vTB + 4 * (k % 4))}, {c}")
        if k + 3 < 40:
            tab_read(k + 3, TAB + 20480)
    dft_front(sT1, EX1, False)
    p.wait_lds()
    p("s_barrier")
    dft_back(sT1, EX1)
    p.opt_end()
    p("L_nou1:")
    stamp(p)
    stamp(p, "p1")

    def readsA(k, tile):
        st, tt = k >> 1, k & 1
        fr = vFR + 16 * (k & 1) + 4 * tile
        for q in range(2):
            p(f"ds_read_b64_tr_b16 {vr(fr + 2 * q, 2)}, v{vRA} offset:{(st % 8) * 8192 + tt * 4096 + tile * 512 + q * 256}")

    def readsCA(k):
        st, tt = k >> 1, k & 1
        for q in range(2):
            p(f"ds_read_b64_tr_b16 {vr(vCF + 4 * (k & 1) + 2 * q, 2)}, v{vCA} offset:{(st % 8) * 8192 + tt * 4096 + q * 256}")

    vCSW, vCSR, vPA, vPH = vXG, vXG + 1, vXG + 2, vXG + 3
    vWA, vFLB, vEX2, vEX3 = vXR, vXR + 1, vXR + 2, vXR + 3
    vUST = vDC
    vFA4, vFH1 = vT + 24, vT + 28
    sTA, sUS = sA, sM0X
    late = []
    late += [f"v_lshrrev_b32 {t(0)}, 4, v0", f"v_lshlrev_b32 {t(1)}, 7, {t(0)}", f"v_add_u32 {t(1)}, s{sK1}, {t(1)}",
             f"v_mul_u32_u24 {t(1)}, 642, {t(1)}", f"v_and_b32 {t(2)}, 15, v0", f"s_lshl_b32 s5, s{sT2}, 4", f"v_add_u32 {t(3)}, s5, {t(2)}",
             f"v_lshl_add_u32 v{vWA}, {t(3)}, 1, {t(1)}", f"s_cmp_ge_u32 s{sJOB}, 21\ns_cselect_b32 s5, {OOB}, 0", f"v_or_b32 v{vWA}, s5, v{vWA}"]
    n_wa = len(late)
    late += [f"v_lshlrev_b32 {t(1)}, 4, {t(0)}", f"v_lshl_add_u32 {t(1)}, {t(2)}, 6, {t(1)}", f"s_lshl_b32 s5, s{sW}, 7",
             f"v_add_u32 {t(1)}, s5, {t(1)}", f"v_add_u32 {t(3)}, 2048, v{vL16}", f"v_cmp_gt_u32 vcc, 2, {t(2)}",
             f"v_lshrrev_b32 {t(4)}, 5, v0", f"v_lshlrev_b32 {t(4)}, 4, {t(4)}", f"v_cndmask_b32 {t(1)}, {t(3)}, {t(1)}, vcc",
             f"v_add_u32 v{vCSW}, {CSX}, {t(1)}", f"v_add_u32 v{vCSR}, {CSX}, {t(4)}",
             f"v_and_b32 {t(1)}, 3, v0", f"v_bfe_u32 {t(3)}, v0, 2, 1", f"v_lshl_add_u32 {t(1)}, {t(3)}, 4, {t(1)}",
             f"s_lshl_b32 s5, s{sPR}, 5\ns_lshl_b32 s6, s{sW}, 2", "s_add_u32 s5, s5, s6", f"v_add_u32 {t(1)}, s5, {t(1)}",
             f"v_lshlrev_b32 {t(1)}, 2, {t(1)}", f"v_add_u32 v{vPH}, {FL_H}, {t(1)}", f"v_add_u32 v{vPA}, {FL_A}, v{vL16}",
             f"s_mul_i32 s5, s{sK1}, 21\ns_add_u32 s5, s5, s{sT2}", f"s_lshl_b32 s5, s5, 12\ns_add_u32 s5, s5, {WS_T}",
             f"s_cmp_ge_u32 s{sJOB}, 21\ns_cselect_b32 s{sTA}, {OOB}, s5",
             f"v_lshlrev_b32 {t(1)}, 10, {t(0)}", f"v_lshl_add_u32 {t(1)}, {t(2)}, 4, {t(1)}",
             f"s_lshl_b32 s5, s{sW}, 2\ns_add_u32 s5, s5, {P2X}", f"v_add_u32 v{vEX2}, s5, {t(1)}",
             f"s_lshl_b32 s5, s{sW}, 12\ns_add_u32 s5, s5, {P2X}", f"v_add_u32 v{vEX3}, s5, v{vL16}",
             f"s_lshl_b32 s5, s{sW}, 4", f"v_add_u32 {t(1)}, s5, {t(0)}", f"v_mul_u32_u24 {t(1)}, {21 * 2048}, {t(1)}",
             f"v_lshl_add_u32 v{vUST}, {t(2)}, 4, {t(1)}",
             f"s_lshl_b32 s5, s{sT2}, 3\ns_add_u32 s5, s5, s{sQ}", f"s_lshl_b32 s6, s5, 8\ns_add_u32 s{sUS}, s6, {WS_U}",
             f"s_mul_i32 s6, s{sW}, 168\ns_add_u32 s5, s5, s6", f"s_lshl_b32 s5, s5, 2\ns_add_u32 s5, s5, {FL_B}",
             f"s_cmp_ge_u32 s{sJOB}, 21\ns_cselect_b32 s5, {OOB}, s5", f"v_mov_b32 {t(1)}, s5", f"v_cmp_eq_u32 vcc, 0, v0",
             f"v_mov_b32 v{vTWO}, 2", f"v_cndmask_b32 v{vFLB}, v{vOOB}, {t(1)}, vcc"]

    for i in range(0, 16, 2):
        p(f"v_mov_b64 {vr(vWR + i, 2)}, 0\nv_mov_b64 {vr(vWI + i, 2)}, 0")
    if OPT['pf_f'] == 1:
        filter_touch()
    for x in late[:n_wa]:
        p(x)
    late = late[n_wa:]
    p.wait_tag(('w', 0))
    p.wait_lds()
    p("s_barrier")
    for tile in range(4):
        readsA(0, tile)
    readsCA(0)
    ring_dma(6)
    for k in range(40):
        nxt = k + 1 < 40
        j = (k + 1) >> 1

        def mfA(tile):
            acc = vACC + 16 * tile
            c = "0" if k == 0 else vr(acc, 16)
            p(f"v_mfma_f32_32x32x16_bf16 {vr(acc, 16)}, {vr(vFR + 16 * (k & 1) + 4 * tile)}, {ar(4 * k)}, {c}")

        mfA(0)
        if k & 1 and nxt:
            if j == 4:
                p.wait_tag(('w', j), 'p0')
            else:
                p.wait_tag(('w', j))
            p("s_barrier")
        if nxt:
            readsA(k + 1, 0)
        if not k & 1 and late:
            p(late.pop(0))
        mfA(1)
        piece = (ring_piece(j + 6, 0)[1:] if nxt else []) if k & 1 else (ring_piece(j + 6, 1) if k > 0 else [])
        emit(piece[:-1])
        if nxt:
            readsA(k + 1, 1)
        emit(piece[-1:])
        mfA(2)
        if nxt:
            readsA(k + 1, 2)
            readsCA(k + 1)
        mfA(3)
        if k >= 8 and not k & 1:
            i = (k - 8) >> 1
            p(f"s_mov_b32 s7, {(i >> 2) * 328704 + (i & 3) * 20544}")
        if nxt:
            readsA(k + 1, 3)
        if k >= 8:
            i = (k - 8) >> 1
            if k & 1:
                p(f"buffer_load_short_d16_hi v{vWI + i}, v{vWA}, {sr(SWI)}, s7 offen")
            else:
                p(f"buffer_load_short_d16_hi v{vWR + i}, v{vWA}, {sr(SWR)}, s7 offen")
        if k == 37:
            poll_issue(vFA4, f"v{vPA}", SWS, 0, x4=True)
        if k == 7:
            p(f"buffer_store_dword v{vONE}, v{vFLA}, {sr(SWS)}, 0 offen sc1")
        c = "0" if k == 0 else vr(vCS)
        p(f"v_mfma_f32_16x16x32_bf16 {vr(vCS)}, {vr(vCF + 4 * (k & 1))}, {vr(vIND)}, {c}")
        if not k & 1 and k < 38:
            emit(ring_piece(j + 7, 0)[:1])
        elif late:
            p(late.pop(0))
    for x in late:
        p(x)
    stamp(p)
    stamp(p, "p1")

    def cs_reads(b, off):
        for a in range(4):
            p(f"ds_read_b128 {vr(b + 4 * a)}, v{vCSR} offset:{off + 32 * a}")

    def cs_apply(acc, b):
        for i in range(0, 16, 2):
            p(f"v_pk_fma_f32 {vr(acc + i, 2)}, {vr(b + i, 2)}, {vr(vNM, 2)}, {vr(acc + i, 2)} op_sel_hi:[1,0,1]")

    def glu_finish(G, U, soff, tag):
        for i in range(0, 16, 2):
            p(f"v_max_f32 v{G + i}, 0, v{G + i}\nv_max_f32 v{G + i + 1}, 0, v{G + i + 1}")
            p(f"v_pk_mul_f32 {vr(U + i, 2)}, {vr(U + i, 2)}, {vr(vR2, 2)} op_sel_hi:[1,0]")
        for u in range(2):
            for i in range(8 * u, 8 * u + 8, 2):
                p(f"v_pk_mul_f32 {vr(G + i, 2)}, {vr(G + i, 2)}, {vr(U + i, 2)}")
            for j in range(4 * u, 4 * u + 4):
                p(f"v_cvt_pk_bf16_f32 v{U + 8 * u + (j & 3)}, v{G + 2 * j}, v{G + 2 * j + 1}")
            p(f"buffer_store_dwordx4 {vr(U + 8 * u)}, v{vHST}, {sr(SWS)}, {soff} offen offset:{u * 512} sc1", tag=tag)

    def readsB(k, mat):
        st, tt = 20 + (k >> 2), k & 3
        fr = vFR + 8 * (k & 1) + 4 * mat
        for q in range(2):
            p(f"ds_read_b64_tr_b16 {vr(fr + 2 * q, 2)}, v{vRB} offset:{(st % 8) * 8192 + tt * 2048 + mat * 1024 + q * 256}")

    def readsCB(k2):
        st, tt = 20 + (k2 >> 1), (k2 & 1) * 2
        for q in range(2):
            p(f"ds_read_b64_tr_b16 {vr(vCF + 4 * (k2 & 1) + 2 * q, 2)}, v{vCB_} offset:{(st % 8) * 8192 + tt * 2048 + q * 256}")

    p(f"ds_write_b128 v{vCSW}, {vr(vCS)}")
    p.wait_tag(('w', 20))
    p.wait_lds()
    p("s_barrier")
    cs_reads(vTB, 0)
    cs_reads(vXT, 256)
    cs_reads(vXT + 16, 128)
    ring_dma(26)
    cs_apply(vACC, vTB)
    cs_reads(vTB, 384)
    readsB(0, 0)
    readsB(0, 1)
    readsCB(0)
    cs_apply(vACC + 32, vXT)
    emit(ring_piece(27, 0))
    glu_finish(vACC, vACC + 32, f"s{sHA}", 'hA')
    emit(ring_piece(27, 1))
    p(f"s_add_u32 s{sHA}, s{sHA}, 2048")
    cs_apply(vACC + 16, vXT + 16)
    cs_apply(vACC + 48, vTB)
    glu_finish(vACC + 16, vACC + 48, f"s{sHA}", 'hA')
    stamp(p, "p1")

    ORDER = [0, 1, 4, 5, 6, 7, 10, 11, 2, 3, 8, 9]
    NG = 12
    wreg = lambda u, j: ar(160 + 20 * (u % 4) + 4 * j)
    hreg = lambda u, j: ar(80 + 16 * (u % 5) + 4 * j)

    def unit_off(u):
        return ORDER[u] if u < NG else (u - NG if u < 17 else -1)

    def w_loads(u):
        base = sWD if u < NG else sIT
        L = [(f"s_add_u32 s{sa}, s{base}, {(unit_off(u) * 40960) & 0xffffffff}", None)]
        for j in range(4):
            L.append((f"buffer_load_dwordx4 {wreg(u, j)}, v{vL16}, {sr(SWS)}, s{sa} offen offset:{j * 1024} sc1", None))
        L.insert(2, (f"s_add_u32 s{sa4}, s{sa}, 4096", None))
        L.append((f"buffer_load_dwordx4 {wreg(u, 4)}, v{vL16}, {sr(SWS)}, s{sa4} offen sc1", None))
        return L

    def h_loads(u):
        base, dl = (sH0, 48 * 2048) if u < NG else (sU0, 21 * 2048)
        L = [(f"s_add_u32 s{sb0}, s{base}, {(unit_off(u) * 2048) & 0xffffffff}", None)]
        for j in range(4):
            L.append((f"buffer_load_dwordx4 {hreg(u, j)}, v{vL16}, {sr(SWS)}, s{sb1 if j >> 1 else sb0} offen offset:{(j & 1) * 1024} sc1", None))
        L.insert(2, (f"s_add_u32 s{sb1}, s{sb0}, {dl}", None))
        return L

    def take(fill):
        out = []
        while fill and fill[0][0].startswith('s_'):
            out.append(fill.pop(0))
        if fill:
            out.append(fill.pop(0))
        return out

    NPRE = 4 if OPT['dpre'] else 0
    pre = [x for u in range(NPRE) for x in w_loads(u)]

    BG, BU = vACC, vACC + 16
    aP2 = 0
    rot = []
    for i in range(16):
        rot += [f"v_alignbit_b32 v{vIN2 + i}, v{vIN + i}, v{vIN + i}, 16", f"v_xor_b32 v{vIN2 + i}, 0x80000000, v{vIN2 + i}"]
    for k in range(40):
        nxt = k + 1 < 40
        j = 20 + ((k + 1) >> 2)

        def mfB(mat):
            acc = vACC + 16 * mat
            c = "0" if k == 0 else vr(acc, 16)
            p(f"v_mfma_f32_32x32x16_bf16 {vr(acc, 16)}, {vr(vFR + 8 * (k & 1) + 4 * mat)}, {ar(4 * k)}, {c}")

        mfB(0)
        if (k & 3) == 3 and nxt:
            p.wait_tag(('w', j))
            p("s_barrier")
        piece = ring_piece(26 + (k >> 2), k & 1) if (k & 3) in (0, 1) and k >= 8 else []
        if k >= 14 and (k & 3) != 3:
            piece = take(pre)
        emit(piece[:-1])
        if nxt:
            readsB(k + 1, 0)
        emit(piece[-1:])
        if k in (0, 6, 8, 14, 22, 30, 39):
            stamp(p, "pb")
        if k == 34:
            poll_issue(vFH1, f"v{vPH}", SWS, 0)
        mfB(1)
        if nxt:
            readsB(k + 1, 1)
        if 1 <= k < 5:
            p(f"buffer_load_dwordx4 {vr(vIN + 4 * (k - 1))}, v{vL16}, {sr(SWS)}, s{sTA} offen offset:{(k - 1) * 1024} sc1")
        if k == 0:
            poll_check(vFA4, f"v{vPA}", SWS, 0, 1, x4=True)
        if k == OPT.get('kha', 11):
            p.wait_tag('hA')
            p(f"buffer_store_dword v{vONE}, v{vFLH}, {sr(SWS)}, 0 offen sc1")
        if 17 <= k < 33:
            p(f"ds_read_b128 {ar(aP2 + 4 * (k - 17))}, v{vL16} offset:{P2C + (k - 17) * 1024}")
        if k >= 24:
            p(rot.pop(0))
            if not k & 1:
                p(rot.pop(0))
        if k & 1:
            k2 = k >> 1
            c = "0" if k2 == 0 else vr(vCS)
            p(f"v_mfma_f32_16x16x32_bf16 {vr(vCS)}, {vr(vCF + 4 * (k2 & 1))}, {vr(vIND)}, {c}")
            if k2 + 1 < 20:
                readsCB(k2 + 1)
    emit(pre)
    stamp(p)
    stamp(p, "p2")
    for x in rot:
        p(x)
    p(f"ds_write_b128 v{vCSW}, {vr(vCS)} offset:512")
    p.wait_lds()
    p("s_barrier")
    cs_reads(vFR, 512)
    cs_reads(vFR + 16, 512 + 256)
    cs_reads(vACC + 32, 512 + 128)
    cs_reads(vACC + 48, 512 + 384)
    cs_apply(BG, vFR)
    cs_apply(BG, vFR + 16)
    cs_apply(BU, vACC + 32)
    cs_apply(BU, vACC + 48)
    glu_finish(BG, BU, f"s{sHB}", 'hB')
    stamp(p, "p2")

    def weave(main, fill, start=0, step=1):
        fill = list(fill)
        for n, m in enumerate(main):
            p(m)
            if n >= start and (n - start) % step == 0:
                emit(take(fill))
        emit(fill)

    vX, vY = vACC + 32, vFR
    first = ([] if NPRE else w_loads(0)) + h_loads(0) + h_loads(1)
    second = ([] if NPRE else w_loads(1)) + h_loads(2)
    poll_check(vFH1, f"v{vPH}", SWS, 0, 1)
    stamp(p, "p2")
    p(f"s_cmp_ge_u32 s{sJOB}, 21\ns_cbranch_scc1 L_nop2")
    r2 = p.opt_begin()

    def dft64(bre, bim):
        L = []
        for k in range(4):
            for mt in range(4):
                for part, b in ((0, bre), (1, bim)):
                    d = vX + 16 * part + 4 * mt
                    c = "0" if k == 0 else vr(d)
                    L.append(f"v_mfma_f32_16x16x32_bf16 {vr(d)}, {ar(aP2 + 16 * mt + 4 * k)}, {vr(b + 4 * k)}, {c}")
        return L

    weave(dft64(vIN, vIN2), first, 0, 3)
    stamp(p, "p2")
    for i in range(16):
        xr, xi, wr_, wi_ = f"v{vX + i}", f"v{vX + 16 + i}", f"v{vWR + i}", f"v{vWI + i}"
        a, b = t(2 * (i % 4)), t(2 * (i % 4) + 1)
        p(f"v_mul_f32 {a}, {xr}, {wr_}\nv_mul_f32 {b}, {xr}, {wi_}")
        p(f"v_fma_f32 {a}, -{xi}, {wi_}, {a}\nv_fmac_f32 {b}, {xi}, {wr_}")
        p(f"v_cvt_pk_bf16_f32 v{vY + i}, {a}, -{b}\nv_cvt_pk_bf16_f32 v{vY + 16 + i}, {b}, {a}")
    p.wait_tag('hB')
    p(f"buffer_store_dword v{vTWO}, v{vFLH}, {sr(SWS)}, 0 offen sc1")
    weave(dft64(vY, vY + 16), second, 0, 3)
    stamp(p, "p2")
    for i in range(16):
        p(f"v_cvt_pk_bf16_f32 {t(i)}, v{vX + i}, v{vX + 16 + i}")
        p(f"ds_write_b32 v{vEX2}, {t(i)} offset:{(16 * (i >> 2) + (i & 3)) * 256}")
    p.wait_lds()
    p("s_barrier")
    for e in range(4):
        p(f"ds_read_b128 {vr(vIN + 4 * e)}, v{vEX3} offset:{e * 1024}")
    for e in range(4):
        p(f"buffer_store_dwordx4 {vr(vIN + 4 * e)}, v{vUST}, {sr(SWS)}, s{sUS} offen sc1", tag='U')
        if e < 3:
            p(f"s_add_u32 s{sUS}, s{sUS}, {4 * 21 * 2048}")
    p("s_branch L_p3")
    p.opt_end()
    p("L_nop2:")
    p.opt_begin(excl=r2)
    emit(first)
    p.wait_tag('hB')
    p(f"buffer_store_dword v{vTWO}, v{vFLH}, {sr(SWS)}, 0 offen sc1")
    emit(second)
    p.opt_end()
    p("L_p3:")
    stamp(p, "p2")
    stamp(p, "p3")
    stamp(p)

    vZ, vZP, vK = 124, 156, 60
    vFH2, vFB1, vPB = vT + 28, vT + 29, vT + 30
    cg = [f"v_lshrrev_b32 {t(6)}, 3, v0", f"v_min_u32 {t(6)}, 5, {t(6)}", f"s_mul_i32 s5, s{sW}, 5", f"s_add_u32 s5, s5, 1",
          f"v_add_u32 {t(7)}, s5, {t(6)}", f"v_cmp_eq_u32 vcc, 5, {t(6)}", f"v_and_b32 {t(8)}, 7, v0", f"s_lshr_b32 s5, s{sPR}, 3",
          f"v_cndmask_b32 {t(7)}, {t(7)}, 0, vcc", f"s_mul_i32 s5, s5, 168", f"v_lshl_add_u32 {t(7)}, {t(7)}, 3, {t(8)}",
          f"v_add_u32 {t(7)}, s5, {t(7)}", f"v_lshlrev_b32 {t(7)}, 2, {t(7)}", f"v_add_u32 v{vPB}, {FL_B}, {t(7)}"]
    cg += [f"v_and_b32 {t(0)}, 15, v0", f"v_lshlrev_b32 {t(0)}, 6, {t(0)}", f"s_lshl_b32 s5, s{sPR}, 1", f"v_add_u32 {t(0)}, s5, {t(0)}",
           f"v_cvt_f32_u32 {t(0)}, {t(0)}", f"v_mul_f32 {t(0)}, {hx(1.0 / 2048)}, {t(0)}", f"v_add_f32 {t(1)}, {hx(1.0 / 2048)}, {t(0)}",
           f"v_lshrrev_b32 {t(2)}, 4, v0", f"v_lshlrev_b32 {t(2)}, 2, {t(2)}", f"v_cvt_f32_u32 {t(2)}, {t(2)}", f"v_add_f32 {t(6)}, {hx(16.0)}, {t(2)}"]
    for e in range(2):
        for k in range(2):
            cg += [f"v_mul_f32 {t(3)}, {t(6) if k else t(2)}, {t(e)}"]
            for r in range(4):
                cg += [f"v_cos_f32 {t(4)}, {t(3)}", f"v_sin_f32 {t(5)}, {t(3)}"]
                if r < 3:
                    cg += [f"v_add_f32 {t(3)}, {t(3)}, {t(e)}"]
                for hf in range(2):
                    n = hf and (r & 1)
                    c, mc = (t(4), '-' + t(4)) if not n else ('-' + t(4), t(4))
                    s_, ms = (t(5), '-' + t(5)) if not n else ('-' + t(5), t(5))
                    b = vK + 32 * e + 16 * hf + 4 * k + r
                    cg += [f"v_cvt_pk_bf16_f32 v{b}, {c}, {ms}", f"v_cvt_pk_bf16_f32 v{b + 8}, {s_}, {c}"]
    vLA, vGAo, vXI, vPW = vT + 8, vT + 12, vT + 16, vT + 11
    cg += [f"v_and_b32 {t(0)}, 15, v0", f"v_mul_u32_u24 {t(0)}, {RS}, {t(0)}", f"v_lshrrev_b32 {t(1)}, 4, v0",
           f"v_lshl_add_u32 {t(0)}, {t(1)}, 4, {t(0)}", f"s_mul_i32 s5, s{sW}, {64 * RS}", f"v_add_u32 v{vPW}, s5, {t(0)}",
           f"s_lshl_b32 s5, s{sW}, 6", f"v_add_u32 {t(1)}, s5, v0",
           f"s_mul_i32 s6, s{sNB}, 160", f"s_mul_i32 s7, s{sPR}, 2560", f"s_add_u32 s6, s6, s7"]
    for it in range(3):
        cg += [f"v_add_u32 {t(2)}, {256 * it}, {t(1)}", f"v_mul_u32_u24 {t(3)}, 6554, {t(2)}", f"v_lshrrev_b32 {t(3)}, 16, {t(3)}",
               f"v_mul_u32_u24 {t(4)}, 10, {t(3)}", f"v_sub_u32 {t(4)}, {t(2)}, {t(4)}",
               f"v_mul_u32_u24 {t(5)}, {RS}, {t(3)}", f"v_lshl_add_u32 v{vLA + it}, {t(4)}, 5, {t(5)}",
               f"v_and_b32 {t(5)}, 31, {t(3)}", f"v_lshlrev_b32 {t(5)}, 6, {t(5)}", f"v_lshrrev_b32 {t(6)}, 5, {t(3)}",
               f"v_add_u32 {t(5)}, {t(5)}, {t(6)}", f"v_mul_u32_u24 {t(5)}, 1280, {t(5)}",
               f"v_lshl_add_u32 {t(5)}, {t(4)}, 4, {t(5)}", f"v_add_u32 v{vGAo + it}, s6, {t(5)}"]
    cg += [f"s_cmp_ge_u32 s{sW}, 2\ns_cselect_b32 s5, {OOB}, 0", f"v_or_b32 v{vGAo + 2}, s5, v{vGAo + 2}"]
    xl = [(f"buffer_load_dwordx4 {vr(vXI + 4 * it)}, v{vGAo + it}, {sr(SX)}, 0 offen", None) for it in range(3)]

    def main_mfma(u, bsrc, first):
        L = []
        for st in range(4):
            for dt in range(5):
                acc = ar(4 * (4 * dt + st))
                c = "0" if first else acc
                L.append(f"v_mfma_f32_16x16x32_bf16 {acc}, {wreg(u, dt)}, {bsrc(st)}, {c}")
        return L

    groups = []
    for u in range(2, 17):
        if u >= max(NPRE, 2):
            groups.append(('w', u, u - 3))
        if u >= 3:
            groups.append(('h', u, u - 4))
    plan = {u: [] for u in range(17)}
    done = 0.0
    for u in range(16):
        done += OPT['quota'] / 2.0 if u < NG else 9
        while groups:
            ok = [g for g in groups if g[2] <= u]
            must = [g for g in groups if g[1] <= u + 1]
            g = must[0] if must else (ok[0] if ok else None)
            if g is None:
                break
            n = 5 if g[0] == 'w' else 4
            if not must and done < n - 1.5:
                break
            assert g[2] <= u
            groups.remove(g)
            plan[u].append(g)
            done -= n
    assert not groups
    if OPT.get('show'):
        print({u: [g[0] + str(g[1]) for g in v] for u, v in plan.items()}, file=sys.stderr)
    uFH = min(u for u in plan if ('h', 8, 4) in plan[u])
    uFB = min(u for u in plan if ('h', 12, 8) in plan[u])

    def fills(u):
        return [x for g in plan[u] for x in (w_loads(g[1]) if g[0] == 'w' else h_loads(g[1]))]

    per = (len(cg) + 9) // 10
    for u in range(NG):
        if u in (4, 8):
            stamp(p, "p3")
        if u == uFH:
            poll_check(vFH2, f"v{vPH}", SWS, 0, 2)
        if u == uFB:
            poll_check(vFB1, f"v{vPB}", SWS, 0, 1)
        fill = fills(u)
        extra = cg[(u - 1) * per:u * per] if 1 <= u <= 10 else []
        for n, m in enumerate(main_mfma(u, lambda st: hreg(u, st), u == 0)):
            p(m)
            if n % 2 == 0 and fill:
                emit(take(fill))
            else:
                for x in extra[:2]:
                    p(x)
                extra = extra[2:]
        emit(fill)
        for x in extra:
            p(x)
        if u == 1:
            p.wait_tag('U')
            p(f"buffer_store_dword v{vONE}, v{vFLB}, {sr(SWS)}, 0 offen sc1")
        if u == uFH - 2:
            poll_issue(vFH2, f"v{vPH}", SWS, 0)
        if u == uFB - 2:
            poll_issue(vFB1, f"v{vPB}", SWS, 0)
    stamp(p, "p3")

    def inv_unit(u, fill):
        L = []
        for k in range(2):
            for st in range(4):
                e, hf = st >> 1, st & 1
                for part in range(2):
                    d = vr(vZ + 8 * st + 4 * part)
                    c = "0" if k == 0 else d
                    L.append(f"v_mfma_f32_16x16x32_bf16 {d}, {hreg(u, 2 * e + k)}, {vr(vK + 32 * e + 16 * hf + 8 * part + 4 * k)}, {c}")
        fill = list(fill)
        for n, m in enumerate(L):
            p(m)
            if n % 3 == 0:
                emit(take(fill))
        for st in range(4):
            for r in range(4):
                p(f"v_cvt_pk_bf16_f32 v{vZP + 4 * st + r}, v{vZ + 8 * st + r}, v{vZ + 8 * st + 4 + r}")
        weave(main_mfma(u, lambda st: vr(vZP + 4 * st), False), fill, 0, 3)

    for u in range(NG, 17):
        if u == 16:
            p(f"s_cmp_lg_u32 s{sW}, 0\ns_cbranch_scc1 L_nold")
            p.opt_begin()
            emit(h_loads(17) + w_loads(17))
            p.opt_end()
            p("L_nold:")
        inv_unit(u, fills(u) + (xl if u == 15 else []))
    p(f"s_cmp_lg_u32 s{sW}, 0\ns_cbranch_scc1 L_nou")
    p.opt_begin()
    inv_unit(17, [])
    p.opt_end()
    p("L_nou:")
    stamp(p, "p3")
    stamp(p)

    for st in range(4):
        for dt in range(5):
            p(f"ds_write_b128 v{vPW}, {ar(4 * (4 * dt + st))} offset:{st * 16 * RS + dt * 64}")
    p.wait_lds()
    p("s_barrier")
    stamp(p, "p3")

    def fin_reads(it):
        b = 60 + 32 * it
        for w in range(4):
            for hh in range(2):
                p(f"ds_read_b128 {vr(b + 8 * w + 4 * hh)}, v{vLA + it} offset:{w * 64 * RS + 16 * hh}")

    def fin(it):
        b = 60 + 32 * it
        o = 160 + 8 * it
        for j in range(4):
            p(f"v_lshlrev_b32 v{o + 2 * j}, 16, v{vXI + 4 * it + j}\nv_and_b32 v{o + 2 * j + 1}, 0xffff0000, v{vXI + 4 * it + j}")
        for w in range(4):
            for j in range(0, 8, 2):
                p(f"v_pk_add_f32 {vr(o + j, 2)}, {vr(o + j, 2)}, {vr(b + 8 * w + j, 2)}")
        for j in range(4):
            p(f"v_cvt_pk_bf16_f32 v{b + j}, v{o + 2 * j}, v{o + 2 * j + 1}")
        p(f"buffer_store_dwordx4 {vr(b)}, v{vGAo + it}, {sr(SO)}, 0 offen {OPT['outf']}")

    fin_reads(0)
    fin_reads(1)
    fin(0)
    p(f"s_cmp_ge_u32 s{sW}, 2\ns_cbranch_scc1 L_nof0")
    p.opt_begin()
    fin_reads(2)
    p.opt_end()
    p("L_nof0:")
    fin(1)
    p(f"s_cmp_ge_u32 s{sW}, 2\ns_cbranch_scc1 L_nof")
    p.opt_begin()
    fin(2)
    p.opt_end()
    p("L_nof:")
    if OPT.get('x_delay_end'):
        p(f"s_mov_b32 s5, {OPT['x_delay_end']}\nL_dly:\nv_add_f32 v1, v1, v1\nv_add_f32 v1, v1, v1\nv_add_f32 v1, v1, v1\nv_add_f32 v1, v1, v1\ns_sub_u32 s5, s5, 1\ns_cmp_lg_u32 s5, 0\ns_cbranch_scc1 L_dly")
    stamp_flush(p)
    p(f"{end}:")
    p("s_endpgm")


def build():
    name = NAME + "_kernel"
    out = [f"; @launch grid=(256,1,1) block=(256,1,1) lds={LDSB}",
           '.amdgcn_target "amdgcn-amd-amdhsa--gfx950"\n.text',
           f".globl {name}\n.p2align 8\n.type {name},@function\n{name}:"]
    p = Prog()
    kernel(p)
    out.append(p.text())
    out.append(f""".section .rodata,"a"
.p2align 6
.amdhsa_kernel {name}
  .amdhsa_next_free_vgpr 512
  .amdhsa_next_free_sgpr 102
  .amdhsa_accum_offset 256
  .amdhsa_group_segment_fixed_size 0
  .amdhsa_kernarg_size 80
  .amdhsa_user_sgpr_count 2
  .amdhsa_user_sgpr_kernarg_segment_ptr 1
  .amdhsa_system_sgpr_workgroup_id_x 1
.end_amdhsa_kernel
""")
    return "\n".join(out)


if __name__ == "__main__":
    dst = sys.argv[1] if len(sys.argv) > 1 else f"cdna_kernels/{NAME}.s"
    for a in sys.argv[2:]:
        if a == "stamps":
            STAMPS = True
        elif a.startswith("zoom="):
            ZOOM = a[5:]
        else:
            k, v = a.split("=")
            OPT[k] = int(v) if v.lstrip('-').isdigit() else v.replace('+', ' ')
    open(dst, "w").write(build())
```
